```python
import torch

def _softmax(x, axis=-1):
    return torch.softmax(x, dim=axis)
def _gelu(x):
    return torch.nn.functional.gelu(x, approximate="tanh")
def _silu(x):
    return torch.nn.functional.silu(x)
def _sigmoid(x):
    return torch.sigmoid(x)
def _layernorm(x, axis=-1, eps=1e-5):
    m = x.mean(dim=axis, keepdim=True)
    v = x.var(dim=axis, keepdim=True, unbiased=False)
    return (x - m) / torch.sqrt(v + eps)
def _scatter_add(tgt, idx, src, axis=0):
    return tgt.clone().index_add_(axis, idx, src)
def _segment_sum(src, seg, n):
    out = torch.zeros((n,) + src.shape[1:], dtype=src.dtype)
    return out.index_add_(0, seg, src)
def _pad(x, pw):
    flat = tuple(v for pair in reversed(pw) for v in pair)
    return torch.nn.functional.pad(x, flat)

kernel_name = 'parallel_sum__ssm_conv_h3__dense_activation_gelu__prompt'

def setup_inputs():

    _w = (lambda a: (lambda t: t.to(torch.bfloat16) if t.is_floating_point() else t)(torch.as_tensor(a)))
    def _A_setup():
        B, S, D = 1, 2048, 640
        ks = 4
        return {
            "q": _w((lambda *s: torch.randn(*s, dtype=torch.bfloat16) * 0.05)(B, S, D)),
            "k": _w((lambda *s: torch.randn(*s, dtype=torch.bfloat16) * 0.2)(B, S, D)),
            "v": _w((lambda *s: torch.randn(*s, dtype=torch.bfloat16) * 0.2)(B, S, D)),
            "shift_k": _w((lambda *s: torch.randn(*s, dtype=torch.bfloat16) * 0.2)(D, ks) * 0.5),
            "ssm_k": _w((lambda *s: torch.randn(*s, dtype=torch.bfloat16) * 0.8)(D, S) * (1.0 / S ** 0.5)),
            "ssm_D": _w((lambda *s: torch.randn(*s, dtype=torch.bfloat16) * 0.2)(D)),
        }
    _A_in = _A_setup()

    def _B_setup():
        B, S, D, F = 1, 2048, 640, 1536
        return {
            "x": _w((lambda *s: torch.randn(*s, dtype=torch.bfloat16) * 0.05)(B, S, D)),
            "w1": _w((lambda *s: torch.randn(*s, dtype=torch.bfloat16) * 0.4)(D, F) * (D ** -0.5)),
            "b1": _w((lambda *s: torch.randn(*s, dtype=torch.bfloat16) * 12.8)(F) * 0.01),
            "w2": _w((lambda *s: torch.randn(*s, dtype=torch.bfloat16) * 0.2)(F, D) * (F ** -0.5)),
            "b2": _w((lambda *s: torch.randn(*s, dtype=torch.bfloat16) * 3.2)(D) * 0.01),
        }
    _B_in = _B_setup()

    return {
        "A_q": _A_in["q"],
        "A_k": _A_in["k"],
        "A_v": _A_in["v"],
        "A_shift_k": _A_in["shift_k"],
        "A_ssm_k": _A_in["ssm_k"],
        "A_ssm_D": _A_in["ssm_D"],
        "B_x": _B_in["x"],
        "B_w1": _B_in["w1"],
        "B_b1": _B_in["b1"],
        "B_w2": _B_in["w2"],
        "B_b2": _B_in["b2"],
    }

def reference(A_q, A_k, A_v, A_shift_k, A_ssm_k, A_ssm_D, B_x, B_w1, B_b1, B_w2, B_b2):
    def _A_ref(q, k, v, shift_k, ssm_k, ssm_D):
        B, S, D = q.shape
        ks = shift_k.shape[-1]
        k_pad = _pad(k, ((0, 0), (ks - 1, 0), (0, 0)))
        k_shift = torch.zeros_like(k)
        for t in range(ks):
            k_shift = k_shift + k_pad[:, t:t + S, :] * shift_k[:, ks - 1 - t][None, None, :]
        kv = k_shift * v
        L = 2 * S
        kv_pad = _pad(kv, ((0, 0), (0, S), (0, 0)))
        kf_pad = _pad(ssm_k, ((0, 0), (0, S)))
        kv_f = (lambda x, axes=(-2,-1): torch.fft.rfft2(x.float(), dim=axes))(kv_pad[:, None, :, :], axes=(1, 2))
        kf_f = (lambda x, axes=(-2,-1): torch.fft.rfft2(x.float(), dim=axes))(kf_pad[:, None, :], axes=(1, 2))
        kf_f = (lambda x, *d: x.permute(*d))(kf_f, 1, 2, 0)
        y_f = kv_f * kf_f[None, :, :, :]
        y = (lambda x, s, axes=(-2,-1): torch.fft.irfft2(x, s=s, dim=axes).to(torch.bfloat16))(y_f, (1, L), axes=(1, 2))[:, 0, :S, :]
        y = y + kv * ssm_D[None, None, :]
        return q * y

    def _B_ref(x, w1, b1, w2, b2):
        h = torch.einsum("bsd,df->bsf", x, w1) + b1
        h = _gelu(h)
        return torch.einsum("bsf,fd->bsd", h, w2) + b2

    x = A_q
    xn = _layernorm(x, axis=-1)
    return x + _A_ref(xn, A_k, A_v, A_shift_k, A_ssm_k, A_ssm_D) + _B_ref(xn, B_w1, B_b1, B_w2, B_b2)
```

```python
NAME = "parallel_sum__ssm_conv_h3__dense_activation_gelu__prompt"
S, D, F = 2048, 640, 1536
WS_H = 0
WS_W2 = WS_H + 128 * 48 * 1024
WS_U = WS_W2 + 8 * 48 * 5 * 1024
WS_Z = WS_U + D * 4096
WS_ST = WS_Z + D * 4096
WS_FL = WS_ST + S * 8
WS_PROF = WS_FL + 32768
WS_END = WS_PROF + 2 * 256 * 8 * 32
KA = dict(q=0, k=8, v=16, shift=24, ssm=32, Dv=40, w1=56, b1=64, w2=72, b2=80, out=88, dbg=96, ws=104)


class Asm:
    def __init__(self):
        self.lines = []
        self.uid = 0

    def __call__(self, s=""):
        for ln in s.split("\n"):
            ln = ln.strip()
            if ln:
                self.lines.append(ln if ln.endswith(":") else "    " + ln)

    def label(self, base):
        self.uid += 1
        return f"L_{base}_{self.uid}"

    def text(self):
        return "\n".join(self.lines) + "\n"


def vr(a, n=1):
    return f"v{a}" if n == 1 else f"v[{a}:{a+n-1}]"


def sr(a, n=1):
    return f"s{a}" if n == 1 else f"s[{a}:{a+n-1}]"


def srd(e, dst, ptr, nbytes, add=0):
    if add:
        e(f"s_add_u32 s{dst}, s{ptr}, {add}")
        e(f"s_addc_u32 s{dst+1}, s{ptr+1}, 0")
    else:
        e(f"s_mov_b32 s{dst}, s{ptr}")
        e(f"s_mov_b32 s{dst+1}, s{ptr+1}")
    e(f"s_mov_b32 s{dst+2}, {nbytes}")
    e(f"s_mov_b32 s{dst+3}, 0x00020000")


def mfma(e, d, a, b, c=None):
    cs = vr(d, 4) if c is None else c
    e(f"v_mfma_f32_16x16x32_bf16 {vr(d,4)}, {vr(a,4)}, {vr(b,4)}, {cs}")


def m0(e, val):
    e(f"s_mov_b32 m0, {val}")
    e("s_nop 0")


def kernel_desc(label):
    return f""".amdhsa_kernel {label}
  .amdhsa_next_free_vgpr 256
  .amdhsa_next_free_sgpr 102
  .amdhsa_accum_offset 256
  .amdhsa_group_segment_fixed_size 0
  .amdhsa_kernarg_size 112
  .amdhsa_user_sgpr_count 2
  .amdhsa_user_sgpr_kernarg_segment_ptr 1
  .amdhsa_system_sgpr_workgroup_id_x 1
.end_amdhsa_kernel
"""


PROF = {"on": False}


def stamp(e, k):
    if PROF["on"]:
        e(f"s_memrealtime s[{60+2*k}:{61+2*k}]")
        if k == 0:
            e("s_memtime s[72:73]")
        if k == 7:
            e("s_memtime s[76:77]")
            e("s_waitcnt lgkmcnt(0)")
            e("s_sub_u32 s72, s76, s72")
        e("s_waitcnt lgkmcnt(0)")


def endp(e, launch):
    if PROF["on"]:
        stamp(e, 7)
        e("s_mov_b64 exec, 1")
        for k in range(8):
            e(f"v_mov_b32 v{240+k}, s{60+2*k}")
        e(f"""s_lshl_b32 s58, s2, 3
        s_add_u32 s58, s58, s24
        s_lshl_b32 s58, s58, 5
        s_add_u32 s58, s58, {WS_PROF + launch*65536}
        v_mov_b32 v250, s58
        buffer_store_dwordx4 v[240:243], v250, s[16:19], 0 offen
        buffer_store_dwordx4 v[244:247], v250, s[16:19], 0 offen offset:16""")
    e("s_endpgm")
```

```python
from common import *
CONV_LDS = 12928

ACC, CS, AF, BF = 16, 64, 88, 136
SUM, ONES, VW, VXD, VX0, VX1, VE, VO, B1 = 152, 156, 160, 163, 164, 165, 166, 167, 168
T = 180
SS, SG = 236, 244
XR = 49152
CST = 114688
PREP = 115200
LDS_A = PREP + 3 * CONV_LDS + 5120
SYNC = CST + 384
SY0, SYS, SYB, SYV = 228, 232, 233, 234


def arrive(e, val):
    e(f"""v_mov_b32 v{SYV}, {val}
    s_mov_b64 exec, 1
    ds_write_b32 v{SYS}, v{SYV}
    s_mov_b64 exec, -1""")


def peek(e):
    e(f"ds_read_b128 {vr(SY0,4)}, v{SYB}")


def await_all(e, val, peeked=True):
    again, done = e.label("sy"), e.label("sd")
    if not peeked:
        e(f"{again}:")
        peek(e)
    body = f"""s_waitcnt lgkmcnt(0)
    v_min3_u32 v{SY0}, v{SY0}, v{SY0+1}, v{SY0+2}
    v_min_u32 v{SY0}, v{SY0}, v{SY0+3}
    v_cmp_gt_u32 vcc, {val}, v{SY0}
    s_nop 1"""
    e(body)
    if not peeked:
        e(f"s_cbranch_vccnz {again}")
        return
    e(f"s_cbranch_vccz {done}")
    e(f"{again}:")
    peek(e)
    e(body)
    e(f"s_cbranch_vccnz {again}")
    e(f"{done}:")


def gemm1(e, opt):
    e(f"s_setprio {opt.get('a_prio', 2)}")
    if opt.get('a_early', 1):
        e(f"""v_lshlrev_b32 v{T}, 4, v1
        v_add_u32 v{T}, {CST}, v{T}
        v_mov_b32 v{T+4}, 0
        v_mov_b32 v{T+5}, 0
        v_mov_b32 v{T+6}, 0
        v_mov_b32 v{T+7}, 0
        v_cmp_gt_u32 vcc, 32, v0
        s_nop 1
        s_and_saveexec_b64 s[42:43], vcc
        s_cbranch_execz A_nozero0
        ds_write_b128 v{T}, {vr(T+4,4)}
        A_nozero0:
        s_mov_b64 exec, -1
        s_waitcnt lgkmcnt(0)
        s_barrier""")
    e("s_load_dwordx2 s[4:5], s[0:1], %d" % KA['q'])
    e("s_load_dwordx2 s[6:7], s[0:1], %d" % KA['w1'])
    e("s_load_dwordx2 s[32:33], s[0:1], %d" % KA['b1'])
    e("s_load_dwordx2 s[34:35], s[0:1], %d" % KA['ws'])
    e("""s_and_b32 s27, s2, 7
    s_lshr_b32 s28, s2, 3
    s_lshr_b32 s25, s27, 1
    s_lshl_b32 s25, s25, 2
    s_and_b32 s29, s28, 3
    s_add_u32 s25, s25, s29
    s_and_b32 s26, s27, 1
    s_lshl_b32 s26, s26, 3
    s_lshr_b32 s29, s28, 2
    s_add_u32 s26, s26, s29
    s_mul_i32 s30, s24, 3072
    s_lshl_b32 s31, s24, 12""")
    e("s_mul_i32 s36, s24, 192")
    e("s_mul_i32 s37, s26, 192")
    e("s_mov_b32 s38, 43691")
    for ii in range(3):
        e(f"""v_add_u32 v{T}, s36, v1
        v_add_u32 v{T}, {64*ii}, v{T}
        v_mul_lo_u32 v{T+1}, v{T}, s38
        v_lshrrev_b32 v{T+1}, 19, v{T+1}
        v_mul_u32_u24 v{T+2}, 12, v{T+1}
        v_sub_u32 v{T+2}, v{T}, v{T+2}
        v_lshrrev_b32 v{T+3}, 2, v{T+1}
        v_and_b32 v{T+3}, 2, v{T+3}
        v_xor_b32 v{T+2}, v{T+2}, v{T+3}
        v_lshlrev_b32 v{T+2}, 4, v{T+2}
        v_mul_u32_u24 v{T+1}, 3072, v{T+1}
        v_add_u32 v{T+1}, v{T+1}, v{T+2}
        v_add_u32 v{VW+ii}, s37, v{T+1}""")
    e(f"""s_lshl_b32 s39, s25, 7
    s_lshl_b32 s40, s24, 5
    s_add_u32 s39, s39, s40
    v_lshrrev_b32 v{T}, 3, v1
    v_and_b32 v{T+1}, 7, v1
    v_xor_b32 v{T+1}, v{T+1}, v{T}
    v_lshlrev_b32 v{T+1}, 4, v{T+1}
    v_add_u32 v{T}, s39, v{T}
    v_mul_u32_u24 v{T}, 1280, v{T}
    v_add_u32 v{VXD}, v{T}, v{T+1}""")
    e(f"""v_and_b32 v{T}, 7, v2
    v_xor_b32 v{T}, v{T}, v3
    v_lshlrev_b32 v{T}, 4, v{T}
    v_lshlrev_b32 v{T+1}, 7, v2
    v_add_u32 v{T}, v{T}, v{T+1}
    v_add_u32 v{T}, s31, v{T}
    v_add_u32 v{VX0}, {XR}, v{T}
    v_xor_b32 v{VX1}, 64, v{VX0}
    v_bfe_u32 v{T}, v1, 2, 2
    v_lshlrev_b32 v{T+1}, 3, v3
    v_add_u32 v{T}, v{T}, v{T+1}
    v_mul_u32_u24 v{T}, 192, v{T}
    v_and_b32 v{T+1}, 3, v1
    v_lshlrev_b32 v{T+1}, 3, v{T+1}
    v_add_u32 v{T}, v{T}, v{T+1}
    v_and_b32 v{T+1}, 1, v3
    v_lshlrev_b32 v{T+1}, 5, v{T+1}
    v_add_u32 v{VE}, v{T}, v{T+1}
    v_sub_u32 v{VO}, v{T}, v{T+1}""")
    e("s_waitcnt lgkmcnt(0)")
    srd(e, 8, 4, S * 1280)
    srd(e, 12, 6, D * 3072)
    srd(e, 16, 34, WS_END)
    srd(e, 20, 32, F * 2)
    e(f"""v_lshlrev_b32 v{T}, 3, v3
    v_add_u32 v{T}, s37, v{T}""")
    for t in range(6):
        e(f"buffer_load_dwordx2 {vr(B1+2*t,2)}, v{T}, s[20:23], 0 offen offset:{32*t}")

    def dma(p):
        out = []
        sg = p & 3
        for ii in range(3):
            out.append([f"s_add_u32 m0, s30, {sg*12288+ii*1024}", f"s_mov_b32 s41, {196608*p}",
                        f"buffer_load_dwordx4 v{VW+ii}, s[12:15], s41 offen lds"])
        for q in range(4):
            out.append([f"s_add_u32 m0, s31, {XR+sg*16384+q*1024}", f"s_mov_b32 s41, {10240*q+128*p}",
                        f"buffer_load_dwordx4 v{VXD}, s[8:11], s41 offen lds"])
        return out

    def reads(step):
        p, kk = step >> 1, step & 1
        sg, buf = p & 3, step & 1
        out = []
        for st in range(2):
            out.append(f"ds_read_b128 {vr(BF+buf*8+st*4,4)}, v{VX1 if kk else VX0} offset:{sg*16384+st*2048}")
        for t in range(6):
            for h in range(2):
                out.append(f"ds_read_b64_tr_b16 {vr(AF+buf*24+t*4+h*2,2)}, v{VO if t&1 else VE} "
                           f"offset:{sg*12288+192*(32*kk+4*h)+32*t}")
        return out

    for p in range(4):
        for g in dma(p):
            e("\n".join(g))
    for r in range(ACC, ACC + 72):
        e(f"v_mov_b32 v{r}, 0")
    for r in range(16):
        e(f"v_mov_b32 v{SS+r}, 0")
    for r in range(4):
        e(f"v_mov_b32 v{ONES+r}, 0x3f803f80")
    e(f"""v_mov_b32 v{SYB}, {SYNC}
    s_lshl_b32 s42, s24, 2
    v_add_u32 v{SYS}, s42, v{SYB}""")
    if opt.get('a_early', 1):
        e("s_waitcnt vmcnt(21)")
        stamp(e, 1)
        arrive(e, 1)
        await_all(e, 1, peeked=False)
    else:
        e(f"""v_lshlrev_b32 v{T}, 4, v1
        v_add_u32 v{T}, {CST}, v{T}
        v_mov_b32 v{T+4}, 0
        v_mov_b32 v{T+5}, 0
        v_mov_b32 v{T+6}, 0
        v_mov_b32 v{T+7}, 0
        v_cmp_gt_u32 vcc, 32, v0
        s_nop 1
        s_and_saveexec_b64 s[42:43], vcc
        s_cbranch_execz A_nozero
        ds_write_b128 v{T}, {vr(T+4,4)}
        A_nozero:
        s_mov_b64 exec, -1
        s_waitcnt vmcnt(21) lgkmcnt(0)""")
        stamp(e, 1)
        e("s_barrier")
    stamp(e, 2)
    for r in reads(0):
        e(r)
    for step in range(20):
        p, kk = step >> 1, step & 1
        buf = step & 1
        e("s_waitcnt lgkmcnt(0)")
        if opt.get('a_steps') and step > 0:
            e(f"v_writelane_b32 v239, s56, {step}")
        ms = [(ACC + (st * 6 + t) * 4, AF + buf * 24 + t * 4, BF + buf * 8 + st * 4) for t in range(6) for st in range(2)]
        stat = []
        for st in range(2):
            stat.append((SS + 4 * st, ONES, BF + buf * 8 + st * 4))
            stat.append((SG + 4 * st, BF + buf * 8 + st * 4, BF + buf * 8 + st * 4))
        pre = opt.get('a_pre', 4)
        ms = stat + ms
        ls = opt.get('a_lsync', 1)
        if ls and kk == 1 and p < 9:
            p1, p2 = opt.get('a_p1', 4), opt.get('a_p2', 8)
            p0 = opt.get('a_p0', 0)
            for (d, a, b) in ms[:p0]:
                mfma(e, d, a, b)
            e(f"s_waitcnt vmcnt({7*(min(p+3,9)-(p+1))})")
            arrive(e, p + 2)
            for (d, a, b) in ms[p0:p1]:
                mfma(e, d, a, b)
            peek(e)
            for (d, a, b) in ms[p1:p2]:
                mfma(e, d, a, b)
            await_all(e, p + 2)
            pre = p2
        else:
            for (d, a, b) in ms[:pre]:
                mfma(e, d, a, b)
        if not ls and kk == 1 and p < 9:
            e(f"s_waitcnt vmcnt({7*(min(p+3,9)-(p+1))})")
            if not opt.get('a_nobar'):
                e("s_barrier")
        rds = reads(step + 1) if step < 19 and not opt.get('a_nords') else []
        dm = dma(p + 4) if (kk == 1 and p + 4 <= 9 and not opt.get('a_nodma')) else []
        if opt.get('a_steps'):
            e("s_memtime s[56:57]")
        per = opt.get('a_per', 3)
        for k, (d, a, b) in enumerate(ms[pre:]):
            mfma(e, d, a, b)
            for _ in range(per):
                if rds:
                    e(rds.pop(0))
            if not rds and dm:
                e("\n".join(dm.pop(0)))
        for g in dm:
            e("\n".join(g))
        lb = e.label("cs")
        e(f"s_cmp_lg_u32 s24, {step & 3}")
        e(f"s_cbranch_scc1 {lb}")
        for t in range(6):
            mfma(e, CS + 4 * t, AF + buf * 24 + 4 * t, ONES)
        e(f"{lb}:")
    stamp(e, 3)
    e(f"""s_nop 7
    v_lshlrev_b32 v{T}, 4, v3
    v_add_u32 v{T}, {CST}, v{T}
    v_cmp_eq_u32 vcc, 0, v2
    s_nop 1
    s_and_saveexec_b64 s[42:43], vcc""")
    for t in range(6):
        for r in range(4):
            e(f"ds_add_f32 v{T}, v{CS+4*t+r} offset:{64*t+4*r}")
    e("s_mov_b64 exec, -1")
    e(f"""v_and_b32 v{T+8}, 3, v2
    v_lshrrev_b32 v{T+9}, 2, v2""")
    for st in range(2):
        q = SUM + 2 + st
        e(f"v_mov_b32 v{SUM+st}, v{SS+4*st}")
        e(f"v_mov_b32 v{q}, v{SG+4*st}")
        for r in range(1, 4):
            e(f"""v_cmp_eq_u32 vcc, {r}, v{T+8}
            s_nop 1
            v_cndmask_b32 v{q}, v{q}, v{SG+4*st+r}, vcc""")
        e(f"""v_cmp_eq_u32 vcc, v{T+9}, v3
        s_nop 1
        v_cndmask_b32 v{q}, 0, v{q}, vcc""")
    for k in (2, 3):
        a, b = SUM + k, T + 8
        e(f"""v_mov_b32 v{b}, v{a}
        s_nop 1
        v_permlane16_swap_b32 v{a}, v{b}
        s_nop 1
        v_add_f32 v{a}, v{a}, v{b}
        v_mov_b32 v{b}, v{a}
        s_nop 1
        v_permlane32_swap_b32 v{a}, v{b}
        s_nop 1
        v_add_f32 v{a}, v{a}, v{b}""")
    NM, RI = T + 10, T + 14
    e("s_mov_b32 s44, 0x3acccccd")
    e("s_mov_b32 s45, 0x3727c5ac")
    for st in range(2):
        m, q = SUM + st, SUM + 2 + st
        e(f"""v_mul_f32 v{m}, s44, v{m}
        v_mul_f32 v{q}, s44, v{q}
        v_fma_f32 v{q}, -v{m}, v{m}, v{q}
        v_max_f32 v{q}, 0, v{q}
        v_cvt_pk_bf16_f32 v{m}, v{m}, v{m}
        v_cvt_pk_bf16_f32 v{q}, v{q}, v{q}
        v_lshlrev_b32 v{m}, 16, v{m}
        v_lshlrev_b32 v{q}, 16, v{q}
        v_add_f32 v{q}, s45, v{q}
        v_cvt_pk_bf16_f32 v{q}, v{q}, v{q}
        v_lshlrev_b32 v{q}, 16, v{q}
        v_sqrt_f32 v{q}, v{q}
        s_nop 0
        v_cvt_pk_bf16_f32 v{q}, v{q}, v{q}
        v_lshlrev_b32 v{q}, 16, v{q}
        v_rcp_f32 v{RI+2*st}, v{q}
        v_sub_f32 v{NM+2*st}, 0, v{m}""")
    e(f"""s_cmp_lg_u32 s26, 0
    s_cbranch_scc1 A_nostat
    v_add_u32 v{T+8}, s39, v2
    v_lshlrev_b32 v{T+8}, 3, v{T+8}
    v_add_u32 v{T+8}, {WS_ST}, v{T+8}
    v_cmp_gt_u32 vcc, 16, v1
    s_nop 1
    s_and_saveexec_b64 s[42:43], vcc""")
    for st in range(2):
        e(f"""v_mov_b32 v{T+18}, v{SUM+st}
        v_mov_b32 v{T+19}, v{RI+2*st}
        buffer_store_dwordx2 {vr(T+18,2)}, v{T+8}, s[16:19], 0 offen offset:{128*st}
        s_nop 1""")
    e("""s_mov_b64 exec, -1
    A_nostat:
    s_waitcnt lgkmcnt(0)""")
    if opt.get('a_lsync', 1):
        arrive(e, 12)
        await_all(e, 12, peeked=False)
    else:
        e("s_barrier")
    stamp(e, 4)
    CSF, B1F = AF, AF + 24
    e(f"v_lshlrev_b32 v{T}, 4, v3")
    e(f"v_add_u32 v{T}, {CST}, v{T}")
    for t in range(6):
        e(f"ds_read_b128 {vr(CSF+4*t,4)}, v{T} offset:{64*t}")
    for t in range(6):
        for h in range(2):
            e(f"v_lshlrev_b32 v{B1F+4*t+2*h}, 16, v{B1+2*t+h}")
            e(f"v_and_b32 v{B1F+4*t+2*h+1}, 0xffff0000, v{B1+2*t+h}")
    C1, ONE = T + 20, T + 22
    e(f"""s_mov_b32 s46, 0xbdd2d3e8
    s_mov_b32 s47, 0xbdd2d3e8
    v_mov_b32 v{C1}, 0xc0135761
    v_mov_b32 v{C1+1}, 0xc0135761
    v_mov_b32 v{ONE}, 1.0
    v_mov_b32 v{ONE+1}, 1.0
    s_lshl_b32 s48, s25, 3
    s_lshl_b32 s49, s24, 1
    s_add_u32 s48, s48, s49
    s_mul_i32 s48, s48, 48
    s_mul_i32 s49, s26, 3
    s_add_u32 s48, s48, s49
    s_lshl_b32 s48, s48, 10
    s_add_u32 s49, s48, 49152
    v_lshlrev_b32 v{T+1}, 4, v1
    s_waitcnt lgkmcnt(0)""")
    X, Q, OUT = T + 24, T + 32, T + 40
    for st in range(2):
        for P in range(3):
            ob = OUT + 4 * ((st * 3 + P) & 3)
            for tt in range(2):
                t = 2 * P + tt
                a = ACC + (st * 6 + t) * 4
                prs = [(a + 2 * h, CSF + 4 * t + 2 * h, B1F + 4 * t + 2 * h, X + 2 * h + 4 * tt, Q + 2 * h + 4 * tt) for h in range(2)]
                if opt.get('a_nopk', 1):
                    el = [(aa + u, cs + u, b1 + u, x + u, q + u) for (aa, cs, b1, x, q) in prs for u in range(2)]
                    for tpl in ("v_fma_f32 v{x}, v{cs}, v{nm}, v{aa}", "v_fma_f32 v{x}, v{x}, v{ri}, v{b1}",
                                "v_mul_f32 v{q}, v{x}, v{x}", "v_fma_f32 v{q}, v{q}, s46, v{c1}",
                                "v_mul_f32 v{q}, v{q}, v{x}", "v_exp_f32 v{q}, v{q}", "v_add_f32 v{q}, 1.0, v{q}",
                                "v_rcp_f32 v{q}, v{q}", "v_mul_f32 v{x}, v{x}, v{q}"):
                        for (aa, cs, b1, x, q) in el:
                            e(tpl.format(aa=aa, cs=cs, b1=b1, x=x, q=q, nm=NM + 2 * st, ri=RI + 2 * st, c1=C1))
                else:
                    for (aa, cs, b1, x, q) in prs:
                        e(f"v_pk_fma_f32 {vr(x,2)}, {vr(cs,2)}, {vr(NM+2*st,2)}, {vr(aa,2)} op_sel_hi:[1,0,1]")
                    for (aa, cs, b1, x, q) in prs:
                        e(f"v_pk_fma_f32 {vr(x,2)}, {vr(x,2)}, {vr(RI+2*st,2)}, {vr(b1,2)} op_sel_hi:[1,0,1]")
                    for (aa, cs, b1, x, q) in prs:
                        e(f"v_pk_mul_f32 {vr(q,2)}, {vr(x,2)}, {vr(x,2)}")
                    for (aa, cs, b1, x, q) in prs:
                        e(f"v_pk_fma_f32 {vr(q,2)}, {vr(q,2)}, s[46:47], {vr(C1,2)}")
                    for (aa, cs, b1, x, q) in prs:
                        e(f"v_pk_mul_f32 {vr(q,2)}, {vr(q,2)}, {vr(x,2)}")
                    for (aa, cs, b1, x, q) in prs:
                        e(f"v_exp_f32 v{q}, v{q}")
                        e(f"v_exp_f32 v{q+1}, v{q+1}")
                    for (aa, cs, b1, x, q) in prs:
                        e(f"v_pk_add_f32 {vr(q,2)}, {vr(q,2)}, {vr(ONE,2)}")
                    for (aa, cs, b1, x, q) in prs:
                        e(f"v_rcp_f32 v{q}, v{q}")
                        e(f"v_rcp_f32 v{q+1}, v{q+1}")
                    for (aa, cs, b1, x, q) in prs:
                        e(f"v_pk_mul_f32 {vr(x,2)}, {vr(x,2)}, {vr(q,2)}")
                for h, (aa, cs, b1, x, q) in enumerate(prs):
                    e(f"v_cvt_pk_bf16_f32 v{ob+2*tt+h}, v{x}, v{x+1}")
            e(f"buffer_store_dwordx4 {vr(ob,4)}, v{T+1}, s[16:19], s{48+st} offen offset:{1024*P}")
    if opt.get('a_steps'):
        e(f"""s_lshl_b32 s58, s2, 2
        s_add_u32 s58, s58, s24
        s_lshl_b32 s58, s58, 8
        s_add_u32 s58, s58, {WS_Z}
        v_lshlrev_b32 v238, 2, v1
        buffer_store_dword v239, v238, s[16:19], s58 offen""")
    endp(e, 0)


def prefetch_a(e, opt):
    e("s_load_dwordx2 s[40:41], s[0:1], %d" % KA['q'])
    e("s_load_dwordx2 s[42:43], s[0:1], %d" % KA['w1'])
    e("""s_and_b32 s44, s2, 7
    s_lshr_b32 s45, s2, 3
    s_sub_u32 s46, s24, 4
    s_mul_i32 s47, s46, 48
    v_add_u32 v4, s47, v1
    s_mov_b32 s48, 5462
    v_mul_lo_u32 v5, v4, s48
    v_lshrrev_b32 v5, 16, v5
    v_mul_u32_u24 v6, 12, v5
    v_sub_u32 v6, v4, v6
    s_lshr_b32 s47, s44, 1
    s_lshl_b32 s47, s47, 9
    s_lshl_b32 s49, s45, 4
    s_add_u32 s47, s47, s49
    v_add_u32 v5, s47, v5
    v_mul_u32_u24 v5, 1280, v5
    v_lshlrev_b32 v6, 6, v6
    v_add_u32 v5, v5, v6
    v_add_u32 v5, 512, v5
    v_bfrev_b32 v7, 1
    v_cmp_gt_u32 vcc, 48, v1
    s_nop 1
    v_cndmask_b32 v5, v7, v5, vcc
    s_mul_i32 s47, s46, 72
    s_mul_i32 s49, s45, 12
    s_add_u32 s49, s49, 256
    s_and_b32 s50, s44, 1
    s_mul_i32 s50, s50, 1536
    s_mov_b32 s48, 2731""")
    for h in range(2):
        e(f"""v_add_u32 v4, s47, v1
        v_add_u32 v4, {64*h}, v4
        v_mul_lo_u32 v8, v4, s48
        v_lshrrev_b32 v8, 16, v8
        v_mul_u32_u24 v6, 24, v8
        v_sub_u32 v6, v4, v6
        v_add_u32 v8, s49, v8
        v_mul_u32_u24 v8, 3072, v8
        v_lshlrev_b32 v6, 6, v6
        v_add_u32 v8, v8, v6
        v_add_u32 v{9+h}, s50, v8""")
    e("""v_cmp_gt_u32 vcc, 8, v1
    s_nop 1
    v_cndmask_b32 v10, v7, v10, vcc
    s_waitcnt lgkmcnt(0)""")
    srd(e, 52, 40, S * 1280)
    srd(e, 56, 42, D * 3072)
    e("""buffer_load_dword v252, v5, s[52:55], 0 offen
    buffer_load_dword v253, v9, s[56:59], 0 offen
    buffer_load_dword v254, v10, s[56:59], 0 offen""")


def conv(e, opt):
    ACC = 8
    FI, UI, AL = 40, 64, 80
    e("s_load_dwordx2 s[4:5], s[0:1], %d" % KA['ssm'])
    e("s_load_dwordx2 s[6:7], s[0:1], %d" % KA['Dv'])
    e("s_load_dwordx2 s[32:33], s[0:1], %d" % KA['dbg'])
    e("""s_and_b32 s25, s2, 7
    s_lshr_b32 s26, s2, 3
    s_sub_u32 s27, s24, 4
    s_cmp_eq_u32 s27, 3
    s_cbranch_scc1 A_cend
    s_mul_i32 s28, s25, 80
    s_add_u32 s28, s28, s27
    s_cmp_ge_u32 s26, 16
    s_cbranch_scc1 A_two
    s_mul_i32 s29, s26, 3
    s_branch A_chan
    A_two:
    s_cmp_eq_u32 s27, 2
    s_cbranch_scc1 A_cend
    s_lshl_b32 s29, s26, 1
    s_add_u32 s29, s29, 16
    A_chan:
    s_add_u32 s28, s28, s29""")
    e(f"""s_mul_i32 s30, s27, {CONV_LDS}
    s_add_u32 s30, s30, {PREP}
    s_lshl_b32 s36, s28, 12
    v_lshlrev_b32 v4, 4, v1
    s_waitcnt lgkmcnt(0)""")
    srd(e, 8, 4, D * 4096)
    srd(e, 12, 6, D * 2)
    srd(e, 20, 32, 256)
    UB = 2 * 4160
    e("s_mov_b32 s37, s36")
    for q in range(4):
        e(f"buffer_load_dwordx4 {vr(FI+6*q,4)}, v4, s[8:11], s37 offen")
        e(f"buffer_load_dword v{FI+6*q+4}, v4, s[8:11], s37 offen offset:16")
        e("s_add_u32 s37, s37, 1024")
    e(f"""v_and_b32 v205, 1, v3
    v_add_u32 v200, v2, v205
    v_subrev_u32 v200, 16, v200
    v_lshlrev_b32 v201, 1, v200
    v_add_u32 v201, s36, v201
    v_cmp_gt_i32 vcc, 0, v200
    v_bfrev_b32 v202, 1
    s_nop 0
    v_cndmask_b32 v201, v201, v202, vcc
    buffer_load_ushort v204, v201, s[8:11], 0 offen
    s_lshl_b32 s38, s28, 1
    v_mov_b32 v201, s38
    buffer_load_ushort v206, v201, s[12:15], 0 offen
    v_mul_u32_u24 v202, 4160, v205
    v_lshlrev_b32 v203, 1, v2
    v_add_u32 v202, v202, v203
    v_add_u32 v202, s30, v202""")
    def lds_wait(name, addr, val, all4, sleep):
        e(f"v_mov_b32 v{SYB}, {addr}")
        e(f"{name}:")
        if all4:
            e(f"""ds_read_b128 {vr(SY0,4)}, v{SYB}
            s_waitcnt lgkmcnt(0)
            v_min3_u32 v{SY0}, v{SY0}, v{SY0+1}, v{SY0+2}
            v_min_u32 v{SY0}, v{SY0}, v{SY0+3}""")
        else:
            e(f"""ds_read_b32 v{SY0}, v{SYB}
            s_waitcnt lgkmcnt(0)""")
        e(f"""v_cmp_gt_u32 vcc, {val}, v{SY0}
        s_nop 1
        s_cbranch_vccz {name}_ok
        s_sleep {sleep}
        s_branch {name}
        {name}_ok:""")
    e("""s_cmp_lg_u32 s27, 0
    s_cbranch_scc1 A_follow""")
    e(f"""v_mov_b32 v210, 0
    s_mov_b32 s40, 0
    A_seen:
    buffer_load_dword v212, v210, s[20:23], 0 offen sc1
    s_add_u32 s40, s40, 1
    s_waitcnt vmcnt(0)
    v_readfirstlane_b32 s38, v212
    s_cmp_eq_u32 s38, 1
    s_cbranch_scc1 A_seen_ok
    s_cmp_ge_u32 s40, 0x40000
    s_cbranch_scc1 A_seen_ok
    s_sleep 8
    s_branch A_seen
    A_seen_ok:""")
    lds_wait("A_stage", SYNC, opt.get('c_stage', 3) + 1, True, 2)
    e(f"""s_cmp_ge_u32 s26, 16
    s_cselect_b32 s38, 1, 2
    s_add_u32 s38, s38, s28
    s_lshr_b32 s38, s38, 6
    s_lshl_b32 s38, s38, 4
    s_lshr_b32 s39, s28, 6
    s_lshl_b32 s39, s39, 4
    v_mov_b32 v210, s38
    v_mov_b32 v211, s39
    v_and_b32 v212, 16, v1
    v_cmp_eq_u32 vcc, 0, v212
    s_mov_b32 s40, 0
    v_cndmask_b32 v210, v210, v211, vcc
    v_add_u32 v210, v210, v2
    v_lshlrev_b32 v210, 7, v210
    v_add_u32 v210, {WS_FL}, v210
    A_poll:
    s_add_u32 s40, s40, 1
    s_cmp_ge_u32 s40, 0x40000
    s_cbranch_scc1 A_ready
    buffer_load_dword v212, v210, s[16:19], 0 offen sc1
    s_waitcnt vmcnt(0)
    v_cmp_ne_u32 vcc, 1, v212
    s_nop 1
    s_cbranch_vccz A_ready
    s_sleep {opt.get('c_sleep', 8)}
    s_branch A_poll
    A_ready:
    v_mov_b32 v210, {SYNC + 20}
    v_mov_b32 v211, 1
    s_mov_b64 exec, 1
    ds_write_b32 v210, v211
    s_mov_b64 exec, -1
    s_branch A_go
    A_follow:""")
    lds_wait("A_fw", SYNC + 20, 1, False, 2)
    e("A_go:")
    stamp(e, 3)
    e(f"s_add_u32 s37, s36, {WS_U}")
    for q in range(4):
        e(f"buffer_load_dwordx4 {vr(UI+4*q,4)}, v4, s[16:19], s37 offen sc1")
        e("s_add_u32 s37, s37, 1024")
    stamp(e, 4)
    e(f"s_setprio {opt.get('c_prio', 1)}")
    e(f"""v_add_u32 v207, s30, v4
    v_lshlrev_b32 v201, 3, v1
    v_add_u32 v201, s30, v201
    v_mov_b32 v208, 0
    v_mov_b32 v209, 0
    ds_write_b64 v201, v[208:209] offset:{UB}
    s_waitcnt vmcnt(4)
    ds_write_b16 v202, v204
    v_lshlrev_b32 v7, 16, v206""")
    for q in range(4):
        f = FI + 6 * q
        a = AL + 8 * (q & 1)
        e(f"ds_write_b128 v207, {vr(f,4)} offset:{32+1024*q}")
        for k in range(4):
            e(f"v_alignbyte_b32 v{a+k}, v{f+k+1}, v{f+k}, 2")
        e(f"ds_write_b128 v207, {vr(a,4)} offset:{4160+32+1024*q}")
    e("s_waitcnt vmcnt(0)")
    for q in range(4):
        e(f"ds_write_b128 v207, {vr(UI+4*q,4)} offset:{UB+512+1024*q}")
    e(f"""v_lshlrev_b32 v201, 3, v3
    v_sub_u32 v201, v2, v201
    v_add_u32 v201, 9, v201
    v_and_b32 v203, 1, v201
    v_sub_u32 v201, v201, v203
    v_add_u32 v201, 16, v201
    v_lshlrev_b32 v201, 1, v201
    v_mul_u32_u24 v203, 4160, v203
    v_add_u32 v201, v201, v203
    v_add_u32 v212, s30, v201
    v_add_u32 v213, 1024, v212
    v_add_u32 v214, 2048, v212
    v_add_u32 v215, 3072, v212
    v_lshlrev_b32 v201, 5, v2
    v_lshlrev_b32 v203, 4, v3
    v_add_u32 v201, v201, v203
    v_add_u32 v201, s30, v201
    v_add_u32 v6, {UB+480-448}, v201""")
    for r in range(32):
        e(f"v_mov_b32 v{ACC+r}, 0")
    e("s_waitcnt lgkmcnt(0)")

    def rd(j0):
        out = []
        for i in range(8):
            a = (40 if (j0 & 1) == 0 else 104) + 4 * i
            b = (72 if (j0 & 1) == 0 else 136) + 4 * i
            out.append(f"ds_read_b128 {vr(b,4)}, v6 offset:{448 + 64*(8*i - j0)}")
            o = 128 * (i & 1) + 16 * j0
            out.append(f"ds_read2_b32 {vr(a,2)}, v{212+(i>>1)} offset0:{o} offset1:{o+1}")
            out.append(f"ds_read2_b32 {vr(a+2,2)}, v{212+(i>>1)} offset0:{o+2} offset1:{o+3}")
        return out

    for r in rd(0):
        e(r)
    for j0 in range(8):
        a0 = 40 if (j0 & 1) == 0 else 104
        b0 = 72 if (j0 & 1) == 0 else 136
        fill = rd(j0 + 1) if j0 < 7 else []
        e("s_waitcnt lgkmcnt(0)")
        n = 0
        for i in range(8):
            for c in range(i, 8):
                mfma(e, ACC + 4 * c, a0 + 4 * i, b0 + 4 * (c - i))
                if fill and n < 24:
                    e(fill.pop(0))
                n += 1
    stamp(e, 5)
    UV = 40
    e(f"""v_lshrrev_b32 v201, 1, v3
    v_lshlrev_b32 v201, 4, v201
    v_and_b32 v203, 1, v3
    v_xor_b32 v203, 1, v203
    v_lshlrev_b32 v203, 3, v203
    v_add_u32 v201, v201, v203
    v_lshlrev_b32 v203, 5, v2
    v_add_u32 v201, v201, v203
    v_add_u32 v201, s30, v201
    v_lshlrev_b32 v202, 3, v3
    v_add_u32 v202, v202, v203
    s_add_u32 s37, s36, {WS_Z}""")
    for c in range(8):
        e(f"ds_read_b64 {vr(UV+2*c,2)}, v201 offset:{UB+512+512*c}")
    e("s_waitcnt lgkmcnt(0)")
    for c in range(8):
        a, u, t = ACC + 4 * c, UV + 2 * c, 60 + 8 * (c & 1)
        e(f"""v_cvt_pk_bf16_f32 v{t}, v{a}, v{a+1}
        v_cvt_pk_bf16_f32 v{t+1}, v{a+2}, v{a+3}
        v_lshlrev_b32 v{a}, 16, v{t}
        v_and_b32 v{a+1}, 0xffff0000, v{t}
        v_lshlrev_b32 v{a+2}, 16, v{t+1}
        v_and_b32 v{a+3}, 0xffff0000, v{t+1}
        v_and_b32 v{t+2}, 0xffff0000, v{u+1}
        v_lshlrev_b32 v{t+3}, 16, v{u+1}
        v_and_b32 v{t+4}, 0xffff0000, v{u}
        v_lshlrev_b32 v{t+5}, 16, v{u}
        v_fma_f32 v{a}, v{t+2}, v7, v{a}
        v_fma_f32 v{a+1}, v{t+3}, v7, v{a+1}
        v_fma_f32 v{a+2}, v{t+4}, v7, v{a+2}
        v_fma_f32 v{a+3}, v{t+5}, v7, v{a+3}
        v_cvt_pk_bf16_f32 v{80+2*c}, v{a}, v{a+1}
        v_cvt_pk_bf16_f32 v{81+2*c}, v{a+2}, v{a+3}
        buffer_store_dwordx2 {vr(80+2*c,2)}, v202, s[16:19], s37 offen offset:{512*c}""")
    endp(e, 0)
    e("A_cend:")
    endp(e, 0)


def prep(e, opt):
    e("""s_lshl_b32 s25, s2, 2
    s_add_u32 s25, s25, s24
    s_sub_u32 s25, s25, 4
    s_sub_u32 s26, s24, 4
    s_mul_i32 s26, s26, %d""" % CONV_LDS)
    e(f"s_add_u32 s26, s26, {PREP}")
    e("s_load_dwordx2 s[34:35], s[0:1], %d" % KA['ws'])
    if opt.get('a_early', 1):
        e("s_barrier")
    if opt.get('p_prio', 0):
        e(f"s_setprio {opt['p_prio']}")
    if opt.get('a_pf', 0):
        prefetch_a(e, opt)
    e("s_cmp_ge_u32 s25, 640")
    e("s_cbranch_scc1 A_w2prep")
    e("s_load_dwordx2 s[4:5], s[0:1], %d" % KA['k'])
    e("s_load_dwordx2 s[6:7], s[0:1], %d" % KA['v'])
    e("s_load_dwordx2 s[32:33], s[0:1], %d" % KA['shift'])
    e("""s_lshr_b32 s28, s2, 4
    s_and_b32 s27, s2, 15
    s_lshl_b32 s27, s27, 2
    s_add_u32 s27, s27, s24
    s_sub_u32 s27, s27, 4
    v_lshrrev_b32 v4, 3, v1
    v_and_b32 v5, 7, v1
    s_lshl_b32 s29, s27, 5
    v_lshlrev_b32 v6, 2, v4
    v_add_u32 v6, s29, v6
    v_mul_u32_u24 v6, 1280, v6
    s_lshl_b32 s30, s28, 7
    v_lshlrev_b32 v7, 4, v5
    v_add_u32 v7, s30, v7
    v_add_u32 v6, v6, v7
    v_lshlrev_b32 v8, 2, v7
    s_waitcnt lgkmcnt(0)""")
    srd(e, 8, 4, S * 1280)
    srd(e, 12, 6, S * 1280)
    srd(e, 20, 32, D * 8)
    srd(e, 16, 34, WS_END)
    K, V, W = 16, 44, 60
    for t in range(7):
        e(f"v_add_u32 v{9}, {(t-3)*1280 & 0xffffffff}, v6")
        e(f"buffer_load_dwordx4 {vr(K+4*t,4)}, v9, s[8:11], 0 offen")
    for t in range(4):
        e(f"buffer_load_dwordx4 {vr(V+4*t,4)}, v6, s[12:15], 0 offen offset:{1280*t}")
    for t in range(4):
        e(f"buffer_load_dwordx4 {vr(W+4*t,4)}, v8, s[20:23], 0 offen offset:{16*t}")
    e("s_load_dwordx2 s[6:7], s[0:1], %d" % KA['dbg'])
    e(f"""s_cmp_lg_u32 s25, 3
    s_cbranch_scc1 A_noclr
    v_lshlrev_b32 v9, 7, v1
    v_mov_b32 v10, 0
    s_mov_b32 s38, {WS_FL}
    buffer_store_dword v10, v9, s[16:19], s38 offen sc1
    s_add_u32 s38, s38, 8192
    buffer_store_dword v10, v9, s[16:19], s38 offen sc1
    s_add_u32 s38, s38, 8192
    buffer_store_dword v10, v9, s[16:19], s38 offen sc1
    A_noclr:
    s_waitcnt lgkmcnt(0)""")
    srd(e, 40, 6, 256)
    if not opt.get('a_early', 1):
        e("s_barrier")
    if 'p_prio2' in opt:
        e(f"s_setprio {opt['p_prio2']}")
    stamp(e, 1)
    e("s_waitcnt vmcnt(0)")
    e(f"""s_cmp_lg_u32 s25, 3
    s_cbranch_scc1 A_noann
    v_mov_b32 v9, 0
    v_mov_b32 v10, 1
    s_mov_b64 exec, 1
    buffer_store_dword v10, v9, s[40:43], 0 offen sc1
    s_mov_b64 exec, -1
    A_noann:""")
    stamp(e, 2)
    KF, WF, VF, R, PK = 80, 136, 168, 200, 232
    for t in range(7):
        for r in range(4):
            e(f"v_lshlrev_b32 v{KF+8*t+2*r}, 16, v{K+4*t+r}")
            e(f"v_and_b32 v{KF+8*t+2*r+1}, 0xffff0000, v{K+4*t+r}")
    for r in range(16):
        e(f"v_lshlrev_b32 v{WF+2*r}, 16, v{W+r}")
        e(f"v_and_b32 v{WF+2*r+1}, 0xffff0000, v{W+r}")
    if not opt.get('a_lsync', 1):
        e("s_barrier")
    for r in range(16):
        e(f"v_lshlrev_b32 v{VF+2*r}, 16, v{V+r}")
        e(f"v_and_b32 v{VF+2*r+1}, 0xffff0000, v{V+r}")
    for i in range(4):
        for j in range(4):
            for c in range(8):
                k = KF + 8 * (i + 3 - j) + c
                wv = WF + 4 * c + j
                if j == 0:
                    e(f"v_mul_f32 v{R+8*i+c}, v{k}, v{wv}")
                else:
                    e(f"v_fma_f32 v{R+8*i+c}, v{k}, v{wv}, v{R+8*i+c}")
        for c in range(8):
            e(f"v_mul_f32 v{R+8*i+c}, v{R+8*i+c}, v{VF+8*i+c}")
        if i & 1 and not opt.get('a_lsync', 1):
            e("s_barrier")
    for c in range(8):
        e(f"v_cvt_pk_bf16_f32 v{PK+2*c}, v{R+24+c}, v{R+16+c}")
        e(f"v_cvt_pk_bf16_f32 v{PK+2*c+1}, v{R+8+c}, v{R+c}")
    e("""v_lshlrev_b32 v9, 5, v5
    v_lshrrev_b32 v10, 1, v4
    v_add_u32 v9, v9, v10
    v_and_b32 v10, 1, v4
    v_xor_b32 v10, 1, v10
    v_lshlrev_b32 v10, 3, v10
    v_add_u32 v10, s26, v10""")
    for c in range(8):
        e(f"""v_add_u32 v11, {4*c}, v9
        v_xor_b32 v11, v11, v5
        v_lshlrev_b32 v11, 4, v11
        v_add_u32 v11, v11, v10
        ds_write_b64 v11, {vr(PK+2*c,2)}""")
    e(f"""v_lshlrev_b32 v9, 4, v1
    v_add_u32 v9, s26, v9
    s_lshl_b32 s30, s28, 18
    s_lshl_b32 s31, s27, 6
    s_add_u32 s30, s30, s31
    s_add_u32 s30, s30, {WS_U}
    s_waitcnt lgkmcnt(0)""")
    for q in range(4):
        e(f"ds_read_b128 {vr(16+4*q,4)}, v9 offset:{1024*q}")
    for q in range(4):
        e(f"""v_lshrrev_b32 v10, 5, v1
        v_add_u32 v10, {2*q}, v10
        v_add_u32 v11, {64*q}, v1
        v_xor_b32 v11, v11, v10
        v_lshrrev_b32 v10, 2, v11
        v_and_b32 v11, 3, v11
        v_lshlrev_b32 v10, 12, v10
        v_lshlrev_b32 v11, 4, v11
        v_add_u32 v{40+q}, v10, v11""")
    for q in range(4):
        e(f"s_waitcnt lgkmcnt({3-q})")
        e(f"buffer_store_dwordx4 {vr(16+4*q,4)}, v{40+q}, s[16:19], s30 offen sc1")
    e(f"""v_mov_b32 v12, 0
    buffer_load_dword v13, v12, s[40:43], 0 offen sc1
    s_waitcnt vmcnt(0)
    v_mov_b32 v9, {SYNC + 16}
    v_mov_b32 v10, 1
    s_mov_b64 exec, 1
    ds_add_rtn_u32 v11, v9, v10
    s_waitcnt lgkmcnt(0)
    v_readfirstlane_b32 s38, v11
    s_cmp_lg_u32 s38, 3
    s_cbranch_scc1 A_noflag
    s_mov_b32 s39, 0
    A_clr:
    v_readfirstlane_b32 s38, v13
    s_cmp_eq_u32 s38, 1
    s_cbranch_scc1 A_flag
    s_add_u32 s39, s39, 1
    s_cmp_ge_u32 s39, 0x40000
    s_cbranch_scc1 A_flag
    s_sleep 8
    buffer_load_dword v13, v12, s[40:43], 0 offen sc1
    s_waitcnt vmcnt(0)
    s_branch A_clr
    A_flag:
    s_lshl_b32 s38, s2, 7
    s_add_u32 s38, s38, {WS_FL}
    buffer_store_dword v10, v12, s[16:19], s38 offen sc1
    A_noflag:
    s_mov_b64 exec, -1
    s_branch A_conv""")
    e("A_w2prep:")
    e("s_load_dwordx2 s[4:5], s[0:1], %d" % KA['w2'])
    e("""s_sub_u32 s25, s25, 640
    s_mul_i32 s27, s25, 1366
    s_lshr_b32 s27, s27, 16
    s_mul_i32 s28, s27, 48
    s_sub_u32 s28, s25, s28
    s_mul_i32 s29, s28, 40960
    s_mul_i32 s30, s27, 160
    s_add_u32 s29, s29, s30
    s_mov_b32 s38, 6554
    s_waitcnt lgkmcnt(0)""")
    srd(e, 8, 4, F * 1280)
    srd(e, 16, 34, WS_END)
    for q in range(5):
        e(f"""v_add_u32 v4, {64*q}, v1
        v_mul_lo_u32 v5, v4, s38
        v_lshrrev_b32 v5, 16, v5
        v_mul_u32_u24 v6, 10, v5
        v_sub_u32 v6, v4, v6
        v_mul_u32_u24 v5, 1280, v5
        v_lshlrev_b32 v6, 4, v6
        v_add_u32 v5, v5, v6
        s_add_u32 m0, s26, {1024*q}
        s_nop 0
        buffer_load_dwordx4 v5, s[8:11], s29 offen lds""")
    if not opt.get('a_early', 1):
        e("s_barrier")
    e(f"""v_bfe_u32 v4, v1, 2, 2
    v_lshlrev_b32 v5, 2, v3
    v_add_u32 v4, v4, v5
    v_mul_u32_u24 v4, 160, v4
    v_and_b32 v5, 3, v1
    v_lshlrev_b32 v5, 3, v5
    v_add_u32 v4, v4, v5
    v_add_u32 v4, s26, v4
    s_mul_i32 s30, s25, 5120
    s_add_u32 s30, s30, {WS_W2}
    v_lshlrev_b32 v6, 4, v1
    v_add_u32 v7, 4096, v6
    s_waitcnt vmcnt(0)""")
    for t in range(5):
        for h in range(2):
            e(f"ds_read_b64_tr_b16 {vr(16+4*t+2*h,2)}, v4 offset:{32*t+2560*h}")
    e("s_waitcnt lgkmcnt(0)")
    for t in range(5):
        e(f"buffer_store_dwordx4 {vr(16+4*t,4)}, v{7 if t==4 else 6}, s[16:19], s30 offen offset:{0 if t==4 else 1024*t}")
    e("s_waitcnt vmcnt(0)")
    e("A_conv:")
    conv(e, opt)


def kernel_a(e, label, opt):
    e(f".globl {label}\n.p2align 8\n.type {label},@function\n{label}:")
    e("""s_cmp_ge_u32 s2, 256
    s_cbranch_scc1 A_exit
    v_lshrrev_b32 v1, 6, v0
    s_nop 0
    v_readfirstlane_b32 s24, v1
    v_and_b32 v1, 63, v0
    v_and_b32 v2, 15, v1
    v_lshrrev_b32 v3, 4, v1
    s_nop 1
    """)
    stamp(e, 0)
    e("""s_cmp_ge_u32 s24, 4
    s_cbranch_scc1 A_prep""")
    gemm1(e, opt)
    e("A_prep:")
    prep(e, opt)
    e("A_exit:")
    e("s_endpgm")
```

```python
from common import *

XCH = 0
ZT = XCH + 12 * 5120
LDS_B = 90112


def gemm2(e, opt):
    ACC, PIPE, T = 8, 88, 232
    e("s_load_dwordx2 s[34:35], s[0:1], %d" % KA['ws'])
    e("s_load_dwordx2 s[4:5], s[0:1], %d" % KA['q'])
    e("s_load_dwordx2 s[6:7], s[0:1], %d" % KA['b2'])
    e("s_load_dwordx2 s[32:33], s[0:1], %d" % KA['out'])
    e("""s_and_b32 s27, s2, 7
    s_lshr_b32 s28, s2, 3
    s_and_b32 s25, s27, 1
    s_lshl_b32 s25, s25, 2
    s_and_b32 s29, s28, 3
    s_add_u32 s25, s25, s29
    s_lshr_b32 s26, s27, 1
    s_lshl_b32 s26, s26, 3
    s_lshr_b32 s29, s28, 2
    s_add_u32 s26, s26, s29
    s_mul_i32 s36, s24, 12""")
    for sl in range(4):
        e(f"""s_add_u32 s29, s24, {sl}
        s_and_b32 s29, s29, 3
        s_lshl_b32 s30, s26, 2
        s_add_u32 s29, s29, s30
        s_mul_i32 s29, s29, 48
        s_add_u32 s29, s29, s36
        s_lshl_b32 s{40+sl}, s29, 10""")
    rot = opt.get('b_rot', 0)
    if rot:
        e(f"""s_and_b32 s45, s28, 3
        s_mul_i32 s45, s45, {rot}
        s_lshr_b32 s46, s28, 2
        s_mul_i32 s46, s46, {opt.get('b_rot2', 1)}
        s_add_u32 s45, s45, s46
        s_cmp_ge_u32 s45, 12
        s_cselect_b32 s46, 12, 0
        s_sub_u32 s45, s45, s46
        s_cmp_ge_u32 s45, 12
        s_cselect_b32 s46, 12, 0
        s_sub_u32 s45, s45, s46
        s_lshl_b32 s46, s45, 10
        s_add_u32 s40, s40, s46
        s_add_u32 s41, s41, s46
        s_add_u32 s42, s42, s46
        s_add_u32 s43, s43, s46
        s_add_u32 s36, s36, s45
        s_mov_b32 s47, {(1024 - 12288) & 0xffffffff}
        s_mov_b32 s48, 1024
        s_mov_b32 s50, {(5120 - 61440) & 0xffffffff}
        s_mov_b32 s51, 5120""")
    e(f"""s_mul_i32 s29, s25, 48
    s_add_u32 s29, s29, s36
    s_mul_i32 s44, s29, 5120
    s_add_u32 s44, s44, {WS_W2}
    v_lshlrev_b32 v4, 4, v1
    v_add_u32 v5, 4096, v4
    s_waitcnt lgkmcnt(0)""")
    srd(e, 16, 34, WS_END)
    srd(e, 8, 4, S * 1280)
    srd(e, 12, 6, D * 2)
    srd(e, 20, 32, S * 1280)

    def loads(k):
        b = PIPE + (k & 3) * 36
        out = []
        for t in range(5):
            out.append([f"buffer_load_dwordx4 {vr(b+16+4*t,4)}, v{5 if t==4 else 4}, s[16:19], s44 offen offset:{0 if t==4 else 1024*t}"])
        out[-1].append("s_add_u32 s44, s44, " + ("s49" if rot else "5120"))
        if rot:
            out[0] = ["s_add_u32 s45, s45, 1", "s_cmp_eq_u32 s45, 12", "s_cselect_b32 s46, s47, s48",
                      "s_cselect_b32 s49, s50, s51"] + out[0]
        for sl in range(4):
            out.append([f"buffer_load_dwordx4 {vr(b+4*sl,4)}, v4, s[16:19], s{40+sl} offen",
                        f"s_add_u32 s{40+sl}, s{40+sl}, " + ("s46" if rot else "1024")])
        return out

    for k in range(3):
        for g in loads(k):
            e("\n".join(g))
    for r in range(80):
        e(f"v_mov_b32 v{ACC+r}, 0")
    stamp(e, 1)
    for k in range(12):
        b = PIPE + (k & 3) * 36
        fill = loads(k + 3) if k + 3 < 12 else []
        e(f"s_waitcnt vmcnt({9*min(2, 11-k)})")
        n = 0
        for t in range(5):
            for sl in range(4):
                mfma(e, ACC + (sl * 5 + t) * 4, b + 16 + 4 * t, b + 4 * sl)
                if n & 1 and fill:
                    e("\n".join(fill.pop(0)))
                n += 1
        for g in fill:
            e("\n".join(g))
    stamp(e, 3)
    XV, B2, STV, PB = 88, 98, 108, 112
    e(f"""s_lshl_b32 s45, s26, 6
    s_lshl_b32 s46, s24, 4
    s_add_u32 s45, s45, s46
    v_add_u32 v6, s45, v2
    v_lshlrev_b32 v7, 3, v6
    v_add_u32 v7, {WS_ST}, v7
    v_mul_u32_u24 v6, 1280, v6
    s_mul_i32 s47, s25, 160
    v_lshlrev_b32 v{T}, 3, v3
    v_add_u32 v{T}, s47, v{T}
    v_add_u32 v6, v6, v{T}""")
    for t in range(5):
        e(f"buffer_load_dwordx2 {vr(XV+2*t,2)}, v6, s[8:11], 0 offen offset:{32*t}")
    for t in range(5):
        e(f"buffer_load_dwordx2 {vr(B2+2*t,2)}, v{T}, s[12:15], 0 offen offset:{32*t}")
    e(f"buffer_load_dwordx2 {vr(STV,2)}, v7, s[16:19], 0 offen")
    e("s_nop 4")
    for sl in range(1, 4):
        e(f"""s_add_u32 s29, s24, {sl}
        s_and_b32 s29, s29, 3
        s_mul_i32 s29, s29, 15360
        s_add_u32 s29, s29, {XCH + (sl-1)*5120}
        v_add_u32 v{T+1}, s29, v4""")
        for t in range(5):
            e(f"ds_write_b128 v{T+1}, {vr(ACC+(sl*5+t)*4,4)} offset:{1024*t}")
    e(f"""s_mul_i32 s29, s24, 15360
    s_add_u32 s29, s29, {XCH}
    v_add_u32 v{T+1}, s29, v4
    v_bfe_u32 v{T+2}, v1, 2, 2
    v_lshlrev_b32 v{T+3}, 2, v3
    v_add_u32 v{T+2}, v{T+2}, v{T+3}
    v_lshlrev_b32 v{T+2}, 7, v{T+2}
    v_and_b32 v{T+3}, 3, v1
    v_lshlrev_b32 v{T+3}, 3, v{T+3}
    v_add_u32 v{T+2}, v{T+2}, v{T+3}
    s_lshl_b32 s29, s24, 5
    s_add_u32 s29, s29, {ZT}
    v_add_u32 v{T+2}, s29, v{T+2}
    s_waitcnt lgkmcnt(0)""")
    stamp(e, 4)
    e("s_barrier")
    stamp(e, 5)
    for j in range(3):
        for t in range(5):
            e(f"ds_read_b128 {vr(PB+(j*5+t)*4,4)}, v{T+1} offset:{j*5120+1024*t}")
        if j == 1:
            e("s_waitcnt lgkmcnt(5)")
            for r in range(20):
                e(f"v_add_f32 v{ACC+r}, v{ACC+r}, v{PB+r}")
    ZV = PB + 60
    for t in range(5):
        e(f"ds_read_b64_tr_b16 {vr(ZV+2*t,2)}, v{T+2} offset:{2048*t}")
    e("s_waitcnt lgkmcnt(10)")
    for r in range(20):
        e(f"v_add_f32 v{ACC+r}, v{ACC+r}, v{PB+20+r}")
    e("s_waitcnt lgkmcnt(5)")
    for r in range(20):
        e(f"v_add_f32 v{ACC+r}, v{ACC+r}, v{PB+40+r}")
    e("s_waitcnt vmcnt(0) lgkmcnt(0)")
    A, Bq, Cq, OUT = PB, PB + 4, PB + 8, PB + 16
    for t in range(5):
        for h in range(2):
            e(f"""v_lshlrev_b32 v{A+2*h}, 16, v{XV+2*t+h}
            v_and_b32 v{A+2*h+1}, 0xffff0000, v{XV+2*t+h}
            v_lshlrev_b32 v{Bq+2*h}, 16, v{ZV+2*t+h}
            v_and_b32 v{Bq+2*h+1}, 0xffff0000, v{ZV+2*t+h}
            v_lshlrev_b32 v{Cq+2*h}, 16, v{B2+2*t+h}
            v_and_b32 v{Cq+2*h+1}, 0xffff0000, v{B2+2*t+h}""")
        for r in range(4):
            a = ACC + 4 * t + r
            e(f"""v_add_f32 v{a}, v{a}, v{Cq+r}
            v_add_f32 v{a}, v{a}, v{A+r}
            v_sub_f32 v{A+r}, v{A+r}, v{STV}
            v_mul_f32 v{A+r}, v{A+r}, v{STV+1}""")
        for h in range(2):
            e(f"v_cvt_pk_bf16_f32 v{A+2*h}, v{A+2*h}, v{A+2*h+1}")
        for h in range(2):
            e(f"""v_and_b32 v{A+2*h+1}, 0xffff0000, v{A+2*h}
            v_lshlrev_b32 v{A+2*h}, 16, v{A+2*h}""")
        for r in range(4):
            a = ACC + 4 * t + r
            e(f"v_fma_f32 v{a}, v{A+r}, v{Bq+r}, v{a}")
        for h in range(2):
            a = ACC + 4 * t + 2 * h
            e(f"v_cvt_pk_bf16_f32 v{OUT+2*t+h}, v{a}, v{a+1}")
        e(f"buffer_store_dwordx2 {vr(OUT+2*t,2)}, v6, s[20:23], 0 offen offset:{32*t}")
    endp(e, 1)


def aux(e, opt):
    e("s_load_dwordx2 s[34:35], s[0:1], %d" % KA['ws'])
    e("""s_and_b32 s27, s2, 7
    s_lshr_b32 s28, s2, 3
    s_and_b32 s25, s27, 1
    s_lshl_b32 s25, s25, 2
    s_and_b32 s29, s28, 3
    s_add_u32 s25, s25, s29
    s_lshr_b32 s26, s27, 1
    s_lshl_b32 s26, s26, 3
    s_lshr_b32 s29, s28, 2
    s_add_u32 s26, s26, s29
    s_waitcnt lgkmcnt(0)""")
    srd(e, 16, 34, WS_END)
    e(f"""v_lshrrev_b32 v6, 3, v1
    v_lshlrev_b32 v6, 12, v6
    v_and_b32 v7, 7, v1
    v_lshlrev_b32 v7, 4, v7
    v_add_u32 v6, v6, v7
    s_mul_i32 s30, s25, {80*4096}
    s_lshl_b32 s31, s26, 7
    s_add_u32 s30, s30, s31
    s_add_u32 s30, s30, {WS_Z}""")
    for q in range(10):
        e(f"""s_mov_b32 m0, {ZT+1024*q}
        s_nop 0
        buffer_load_dwordx4 v6, s[16:19], s30 offen lds
        s_add_u32 s30, s30, {8*4096}""")
    e("s_waitcnt vmcnt(0)")
    stamp(e, 4)
    e("s_barrier")
    endp(e, 1)


def kernel_b(e, label, opt):
    e(f".globl {label}\n.p2align 8\n.type {label},@function\n{label}:")
    e(f"""s_cmp_ge_u32 s2, 256
    s_cbranch_scc1 B_exit
    v_lshrrev_b32 v1, 6, v0
    s_nop 0
    v_readfirstlane_b32 s24, v1
    v_and_b32 v1, 63, v0
    v_and_b32 v2, 15, v1
    v_lshrrev_b32 v3, 4, v1
    s_nop 1""")
    stamp(e, 0)
    e("""s_cmp_eq_u32 s24, 4
    s_cbranch_scc1 B_aux""")
    gemm2(e, opt)
    e("B_aux:")
    aux(e, opt)
    e("B_exit:")
    e("s_endpgm")
```

```python
import sys, json, os
sys.path.insert(0, os.path.dirname(os.path.abspath(__file__)))
from common import *
import ka, kb

def build(opt):
    PROF['on'] = bool(opt.get('prof'))
    ref = open(f"cdna_kernels/{NAME}.s.ref").read().split("\n")
    hdr = []
    for ln in ref:
        if ln.startswith("; Override launch geometry"):
            break
        hdr.append(ln)
    la, lb = f"{NAME}_kernel", f"{NAME}_b_kernel"
    hdr.append(f"; @launch kernel={la} grid=(256,1,1) block=(512,1,1) lds={ka.LDS_A}")
    hdr.append(f"; @launch kernel={lb} grid=(256,1,1) block=(320,1,1) lds={kb.LDS_B}")
    e = Asm()
    e('.amdgcn_target "amdgcn-amd-amdhsa--gfx950"')
    e(".text")
    ka.kernel_a(e, la, opt)
    kb.kernel_b(e, lb, opt)
    body = e.text().replace("    .amdgcn_target", ".amdgcn_target").replace("    .text", ".text")
    return "\n".join(hdr) + "\n" + body + '.section .rodata,"a"\n.p2align 6\n' + kernel_desc(la) + ".p2align 6\n" + kernel_desc(lb)

if __name__ == "__main__":
    out = sys.argv[1] if len(sys.argv) > 1 else f"cdna_kernels/{NAME}.s"
    opt = json.loads(sys.argv[2]) if len(sys.argv) > 2 else {}
    open(out, "w").write(build(opt))
    print("wrote", out, ka.LDS_A, kb.LDS_B)
```

```python
NAME = "parallel_sum__ssm_conv_h3__dense_activation_gelu__prompt"
S, D, F = 2048, 640, 1536
WS_H = 0
WS_W2 = WS_H + 128 * 48 * 1024
WS_U = WS_W2 + 8 * 48 * 5 * 1024
WS_Z = WS_U + D * 4096
WS_ST = WS_Z + D * 4096
WS_FL = WS_ST + S * 8
WS_PROF = WS_FL + 32768
WS_END = WS_PROF + 2 * 256 * 8 * 32
KA = dict(q=0, k=8, v=16, shift=24, ssm=32, Dv=40, w1=56, b1=64, w2=72, b2=80, out=88, dbg=96, ws=104)


class Asm:
    def __init__(self):
        self.lines = []
        self.uid = 0

    def __call__(self, s=""):
        for ln in s.split("\n"):
            ln = ln.strip()
            if ln:
                self.lines.append(ln if ln.endswith(":") else "    " + ln)

    def label(self, base):
        self.uid += 1
        return f"L_{base}_{self.uid}"

    def text(self):
        return "\n".join(self.lines) + "\n"


def vr(a, n=1):
    return f"v{a}" if n == 1 else f"v[{a}:{a+n-1}]"


def sr(a, n=1):
    return f"s{a}" if n == 1 else f"s[{a}:{a+n-1}]"


def srd(e, dst, ptr, nbytes, add=0):
    if add:
        e(f"s_add_u32 s{dst}, s{ptr}, {add}")
        e(f"s_addc_u32 s{dst+1}, s{ptr+1}, 0")
    else:
        e(f"s_mov_b32 s{dst}, s{ptr}")
        e(f"s_mov_b32 s{dst+1}, s{ptr+1}")
    e(f"s_mov_b32 s{dst+2}, {nbytes}")
    e(f"s_mov_b32 s{dst+3}, 0x00020000")


def mfma(e, d, a, b, c=None):
    cs = vr(d, 4) if c is None else c
    e(f"v_mfma_f32_16x16x32_bf16 {vr(d,4)}, {vr(a,4)}, {vr(b,4)}, {cs}")


def m0(e, val):
    e(f"s_mov_b32 m0, {val}")
    e("s_nop 0")


def kernel_desc(label):
    return f""".amdhsa_kernel {label}
  .amdhsa_next_free_vgpr 256
  .amdhsa_next_free_sgpr 102
  .amdhsa_accum_offset 256
  .amdhsa_group_segment_fixed_size 0
  .amdhsa_kernarg_size 112
  .amdhsa_user_sgpr_count 2
  .amdhsa_user_sgpr_kernarg_segment_ptr 1
  .amdhsa_system_sgpr_workgroup_id_x 1
.end_amdhsa_kernel
"""


PROF = {"on": False}


def stamp(e, k):
    if PROF["on"]:
        e(f"s_memrealtime s[{60+2*k}:{61+2*k}]")
        if k == 0:
            e("s_memtime s[72:73]")
        if k == 7:
            e("s_memtime s[76:77]")
            e("s_waitcnt lgkmcnt(0)")
            e("s_sub_u32 s72, s76, s72")
        e("s_waitcnt lgkmcnt(0)")


def endp(e, launch, stop=True):
    if PROF["on"]:
        stamp(e, 7)
        e("s_mov_b64 exec, 1")
        for k in range(8):
            e(f"v_mov_b32 v{240+k}, s{60+2*k}")
        e(f"""s_lshl_b32 s58, s2, 3
        s_add_u32 s58, s58, s24
        s_lshl_b32 s58, s58, 5
        s_add_u32 s58, s58, {WS_PROF + launch*65536}
        v_mov_b32 v250, s58
        buffer_store_dwordx4 v[240:243], v250, s[16:19], 0 offen
        buffer_store_dwordx4 v[244:247], v250, s[16:19], 0 offen offset:16""")
        if not stop:
            e("s_mov_b64 exec, -1")
    if stop:
        e("s_endpgm")
```

```python
from common import *
CONV_LDS = 12928

ACC, CS, AF, BF = 16, 64, 88, 136
SUM, ONES, VW, VXD, VX0, VX1, VE, VO, B1 = 152, 156, 160, 163, 164, 165, 166, 167, 168
T = 180
SS, SG = 236, 244
XR = 49152
CST = 114688
PREP = 115200
LDS_A = PREP + 3 * CONV_LDS + 5120
SYNC = CST + 384
SY0, SYS, SYB, SYV = 228, 232, 233, 234


def SC(opt):
    return " sc1" if opt.get('fuse', 1) else ""


def arrive(e, val):
    e(f"""v_mov_b32 v{SYV}, {val}
    s_mov_b64 exec, 1
    ds_write_b32 v{SYS}, v{SYV}
    s_mov_b64 exec, -1""")


def peek(e):
    e(f"ds_read_b128 {vr(SY0,4)}, v{SYB}")


def await_all(e, val, peeked=True):
    again, done = e.label("sy"), e.label("sd")
    if not peeked:
        e(f"{again}:")
        peek(e)
    body = f"""s_waitcnt lgkmcnt(0)
    v_min3_u32 v{SY0}, v{SY0}, v{SY0+1}, v{SY0+2}
    v_min_u32 v{SY0}, v{SY0}, v{SY0+3}
    v_cmp_gt_u32 vcc, {val}, v{SY0}
    s_nop 1"""
    e(body)
    if not peeked:
        e(f"s_cbranch_vccnz {again}")
        return
    e(f"s_cbranch_vccz {done}")
    e(f"{again}:")
    peek(e)
    e(body)
    e(f"s_cbranch_vccnz {again}")
    e(f"{done}:")


def gemm1(e, opt):
    e(f"s_setprio {opt.get('a_prio', 2)}")
    if opt.get('a_early', 1):
        e(f"""v_lshlrev_b32 v{T}, 4, v1
        v_add_u32 v{T}, {CST}, v{T}
        v_mov_b32 v{T+4}, 0
        v_mov_b32 v{T+5}, 0
        v_mov_b32 v{T+6}, 0
        v_mov_b32 v{T+7}, 0
        v_cmp_gt_u32 vcc, 32, v0
        s_nop 1
        s_and_saveexec_b64 s[42:43], vcc
        s_cbranch_execz A_nozero0
        ds_write_b128 v{T}, {vr(T+4,4)}
        A_nozero0:
        s_mov_b64 exec, -1
        s_waitcnt lgkmcnt(0)
        s_barrier""")
    e("s_load_dwordx2 s[4:5], s[0:1], %d" % KA['q'])
    e("s_load_dwordx2 s[6:7], s[0:1], %d" % KA['w1'])
    e("s_load_dwordx2 s[32:33], s[0:1], %d" % KA['b1'])
    e("s_load_dwordx2 s[34:35], s[0:1], %d" % KA['ws'])
    e("""s_and_b32 s27, s2, 7
    s_lshr_b32 s28, s2, 3
    s_lshr_b32 s25, s27, 1
    s_lshl_b32 s25, s25, 2
    s_and_b32 s29, s28, 3
    s_add_u32 s25, s25, s29
    s_and_b32 s26, s27, 1
    s_lshl_b32 s26, s26, 3
    s_lshr_b32 s29, s28, 2
    s_add_u32 s26, s26, s29
    s_mul_i32 s30, s24, 3072
    s_lshl_b32 s31, s24, 12""")
    e("s_mul_i32 s36, s24, 192")
    e("s_mul_i32 s37, s26, 192")
    e("s_mov_b32 s38, 43691")
    for ii in range(3):
        e(f"""v_add_u32 v{T}, s36, v1
        v_add_u32 v{T}, {64*ii}, v{T}
        v_mul_lo_u32 v{T+1}, v{T}, s38
        v_lshrrev_b32 v{T+1}, 19, v{T+1}
        v_mul_u32_u24 v{T+2}, 12, v{T+1}
        v_sub_u32 v{T+2}, v{T}, v{T+2}
        v_lshrrev_b32 v{T+3}, 2, v{T+1}
        v_and_b32 v{T+3}, 2, v{T+3}
        v_xor_b32 v{T+2}, v{T+2}, v{T+3}
        v_lshlrev_b32 v{T+2}, 4, v{T+2}
        v_mul_u32_u24 v{T+1}, 3072, v{T+1}
        v_add_u32 v{T+1}, v{T+1}, v{T+2}
        v_add_u32 v{VW+ii}, s37, v{T+1}""")
    e(f"""s_lshl_b32 s39, s25, 7
    s_lshl_b32 s40, s24, 5
    s_add_u32 s39, s39, s40
    v_lshrrev_b32 v{T}, 3, v1
    v_and_b32 v{T+1}, 7, v1
    v_xor_b32 v{T+1}, v{T+1}, v{T}
    v_lshlrev_b32 v{T+1}, 4, v{T+1}
    v_add_u32 v{T}, s39, v{T}
    v_mul_u32_u24 v{T}, 1280, v{T}
    v_add_u32 v{VXD}, v{T}, v{T+1}""")
    e(f"""v_and_b32 v{T}, 7, v2
    v_xor_b32 v{T}, v{T}, v3
    v_lshlrev_b32 v{T}, 4, v{T}
    v_lshlrev_b32 v{T+1}, 7, v2
    v_add_u32 v{T}, v{T}, v{T+1}
    v_add_u32 v{T}, s31, v{T}
    v_add_u32 v{VX0}, {XR}, v{T}
    v_xor_b32 v{VX1}, 64, v{VX0}
    v_bfe_u32 v{T}, v1, 2, 2
    v_lshlrev_b32 v{T+1}, 3, v3
    v_add_u32 v{T}, v{T}, v{T+1}
    v_mul_u32_u24 v{T}, 192, v{T}
    v_and_b32 v{T+1}, 3, v1
    v_lshlrev_b32 v{T+1}, 3, v{T+1}
    v_add_u32 v{T}, v{T}, v{T+1}
    v_and_b32 v{T+1}, 1, v3
    v_lshlrev_b32 v{T+1}, 5, v{T+1}
    v_add_u32 v{VE}, v{T}, v{T+1}
    v_sub_u32 v{VO}, v{T}, v{T+1}""")
    e("s_waitcnt lgkmcnt(0)")
    srd(e, 8, 4, S * 1280)
    srd(e, 12, 6, D * 3072)
    srd(e, 16, 34, WS_END)
    srd(e, 20, 32, F * 2)
    e(f"""v_lshlrev_b32 v{T}, 3, v3
    v_add_u32 v{T}, s37, v{T}""")
    for t in range(6):
        e(f"buffer_load_dwordx2 {vr(B1+2*t,2)}, v{T}, s[20:23], 0 offen offset:{32*t}")

    def dma(p):
        out = []
        sg = p & 3
        for ii in range(3):
            out.append([f"s_add_u32 m0, s30, {sg*12288+ii*1024}", f"s_mov_b32 s41, {196608*p}",
                        f"buffer_load_dwordx4 v{VW+ii}, s[12:15], s41 offen lds"])
        for q in range(4):
            out.append([f"s_add_u32 m0, s31, {XR+sg*16384+q*1024}", f"s_mov_b32 s41, {10240*q+128*p}",
                        f"buffer_load_dwordx4 v{VXD}, s[8:11], s41 offen lds"])
        return out

    def reads(step):
        p, kk = step >> 1, step & 1
        sg, buf = p & 3, step & 1
        out = []
        for st in range(2):
            out.append(f"ds_read_b128 {vr(BF+buf*8+st*4,4)}, v{VX1 if kk else VX0} offset:{sg*16384+st*2048}")
        for t in range(6):
            for h in range(2):
                out.append(f"ds_read_b64_tr_b16 {vr(AF+buf*24+t*4+h*2,2)}, v{VO if t&1 else VE} "
                           f"offset:{sg*12288+192*(32*kk+4*h)+32*t}")
        return out

    for p in range(4):
        for g in dma(p):
            e("\n".join(g))
    for r in range(ACC, ACC + 72):
        e(f"v_mov_b32 v{r}, 0")
    for r in range(16):
        e(f"v_mov_b32 v{SS+r}, 0")
    for r in range(4):
        e(f"v_mov_b32 v{ONES+r}, 0x3f803f80")
    e(f"""v_mov_b32 v{SYB}, {SYNC}
    s_lshl_b32 s42, s24, 2
    v_add_u32 v{SYS}, s42, v{SYB}""")
    if opt.get('a_early', 1):
        e("s_waitcnt vmcnt(21)")
        stamp(e, 1)
        arrive(e, 1)
        await_all(e, 1, peeked=False)
    else:
        e(f"""v_lshlrev_b32 v{T}, 4, v1
        v_add_u32 v{T}, {CST}, v{T}
        v_mov_b32 v{T+4}, 0
        v_mov_b32 v{T+5}, 0
        v_mov_b32 v{T+6}, 0
        v_mov_b32 v{T+7}, 0
        v_cmp_gt_u32 vcc, 32, v0
        s_nop 1
        s_and_saveexec_b64 s[42:43], vcc
        s_cbranch_execz A_nozero
        ds_write_b128 v{T}, {vr(T+4,4)}
        A_nozero:
        s_mov_b64 exec, -1
        s_waitcnt vmcnt(21) lgkmcnt(0)""")
        stamp(e, 1)
        e("s_barrier")
    stamp(e, 2)
    for r in reads(0):
        e(r)
    for step in range(20):
        p, kk = step >> 1, step & 1
        buf = step & 1
        e("s_waitcnt lgkmcnt(0)")
        if opt.get('a_steps') and step > 0:
            e(f"v_writelane_b32 v239, s56, {step}")
        ms = [(ACC + (st * 6 + t) * 4, AF + buf * 24 + t * 4, BF + buf * 8 + st * 4) for t in range(6) for st in range(2)]
        stat = []
        for st in range(2):
            stat.append((SS + 4 * st, ONES, BF + buf * 8 + st * 4))
            stat.append((SG + 4 * st, BF + buf * 8 + st * 4, BF + buf * 8 + st * 4))
        pre = opt.get('a_pre', 4)
        ms = stat + ms
        ls = opt.get('a_lsync', 1)
        if ls and kk == 1 and p < 9:
            p1, p2 = opt.get('a_p1', 4), opt.get('a_p2', 8)
            p0 = opt.get('a_p0', 0)
            for (d, a, b) in ms[:p0]:
                mfma(e, d, a, b)
            e(f"s_waitcnt vmcnt({7*(min(p+3,9)-(p+1))})")
            arrive(e, p + 2)
            for (d, a, b) in ms[p0:p1]:
                mfma(e, d, a, b)
            peek(e)
            for (d, a, b) in ms[p1:p2]:
                mfma(e, d, a, b)
            await_all(e, p + 2)
            pre = p2
        else:
            for (d, a, b) in ms[:pre]:
                mfma(e, d, a, b)
        if not ls and kk == 1 and p < 9:
            e(f"s_waitcnt vmcnt({7*(min(p+3,9)-(p+1))})")
            if not opt.get('a_nobar'):
                e("s_barrier")
        rds = reads(step + 1) if step < 19 and not opt.get('a_nords') else []
        dm = dma(p + 4) if (kk == 1 and p + 4 <= 9 and not opt.get('a_nodma')) else []
        if opt.get('a_steps'):
            e("s_memtime s[56:57]")
        per = opt.get('a_per', 3)
        for k, (d, a, b) in enumerate(ms[pre:]):
            mfma(e, d, a, b)
            for _ in range(per):
                if rds:
                    e(rds.pop(0))
            if not rds and dm:
                e("\n".join(dm.pop(0)))
        for g in dm:
            e("\n".join(g))
        lb = e.label("cs")
        e(f"s_cmp_lg_u32 s24, {step & 3}")
        e(f"s_cbranch_scc1 {lb}")
        for t in range(6):
            mfma(e, CS + 4 * t, AF + buf * 24 + 4 * t, ONES)
        e(f"{lb}:")
    stamp(e, 3)
    e(f"""s_nop 7
    v_lshlrev_b32 v{T}, 4, v3
    v_add_u32 v{T}, {CST}, v{T}
    v_cmp_eq_u32 vcc, 0, v2
    s_nop 1
    s_and_saveexec_b64 s[42:43], vcc""")
    for t in range(6):
        for r in range(4):
            e(f"ds_add_f32 v{T}, v{CS+4*t+r} offset:{64*t+4*r}")
    e("s_mov_b64 exec, -1")
    e(f"""v_and_b32 v{T+8}, 3, v2
    v_lshrrev_b32 v{T+9}, 2, v2""")
    for st in range(2):
        q = SUM + 2 + st
        e(f"v_mov_b32 v{SUM+st}, v{SS+4*st}")
        e(f"v_mov_b32 v{q}, v{SG+4*st}")
        for r in range(1, 4):
            e(f"""v_cmp_eq_u32 vcc, {r}, v{T+8}
            s_nop 1
            v_cndmask_b32 v{q}, v{q}, v{SG+4*st+r}, vcc""")
        e(f"""v_cmp_eq_u32 vcc, v{T+9}, v3
        s_nop 1
        v_cndmask_b32 v{q}, 0, v{q}, vcc""")
    for k in (2, 3):
        a, b = SUM + k, T + 8
        e(f"""v_mov_b32 v{b}, v{a}
        s_nop 1
        v_permlane16_swap_b32 v{a}, v{b}
        s_nop 1
        v_add_f32 v{a}, v{a}, v{b}
        v_mov_b32 v{b}, v{a}
        s_nop 1
        v_permlane32_swap_b32 v{a}, v{b}
        s_nop 1
        v_add_f32 v{a}, v{a}, v{b}""")
    NM, RI = T + 10, T + 14
    e("s_mov_b32 s44, 0x3acccccd")
    e("s_mov_b32 s45, 0x3727c5ac")
    for st in range(2):
        m, q = SUM + st, SUM + 2 + st
        e(f"""v_mul_f32 v{m}, s44, v{m}
        v_mul_f32 v{q}, s44, v{q}
        v_fma_f32 v{q}, -v{m}, v{m}, v{q}
        v_max_f32 v{q}, 0, v{q}
        v_cvt_pk_bf16_f32 v{m}, v{m}, v{m}
        v_cvt_pk_bf16_f32 v{q}, v{q}, v{q}
        v_lshlrev_b32 v{m}, 16, v{m}
        v_lshlrev_b32 v{q}, 16, v{q}
        v_add_f32 v{q}, s45, v{q}
        v_cvt_pk_bf16_f32 v{q}, v{q}, v{q}
        v_lshlrev_b32 v{q}, 16, v{q}
        v_sqrt_f32 v{q}, v{q}
        s_nop 0
        v_cvt_pk_bf16_f32 v{q}, v{q}, v{q}
        v_lshlrev_b32 v{q}, 16, v{q}
        v_rcp_f32 v{RI+2*st}, v{q}
        v_sub_f32 v{NM+2*st}, 0, v{m}""")
    e(f"""s_cmp_lg_u32 s26, 0
    s_cbranch_scc1 A_nostat
    v_add_u32 v{T+8}, s39, v2
    v_lshlrev_b32 v{T+8}, 3, v{T+8}
    v_add_u32 v{T+8}, {WS_ST}, v{T+8}
    v_cmp_gt_u32 vcc, 16, v1
    s_nop 1
    s_and_saveexec_b64 s[42:43], vcc""")
    for st in range(2):
        e(f"""v_mov_b32 v{T+18}, v{SUM+st}
        v_mov_b32 v{T+19}, v{RI+2*st}
        buffer_store_dwordx2 {vr(T+18,2)}, v{T+8}, s[16:19], 0 offen offset:{128*st}{SC(opt)}
        s_nop 1""")
    e("""s_mov_b64 exec, -1
    A_nostat:
    s_waitcnt lgkmcnt(0)""")
    if opt.get('a_lsync', 1):
        arrive(e, 12)
        await_all(e, 12, peeked=False)
    else:
        e("s_barrier")
    stamp(e, 4)
    CSF, B1F = AF, AF + 24
    e(f"v_lshlrev_b32 v{T}, 4, v3")
    e(f"v_add_u32 v{T}, {CST}, v{T}")
    for t in range(6):
        e(f"ds_read_b128 {vr(CSF+4*t,4)}, v{T} offset:{64*t}")
    for t in range(6):
        for h in range(2):
            e(f"v_lshlrev_b32 v{B1F+4*t+2*h}, 16, v{B1+2*t+h}")
            e(f"v_and_b32 v{B1F+4*t+2*h+1}, 0xffff0000, v{B1+2*t+h}")
    C1, ONE = T + 20, T + 22
    e(f"""s_mov_b32 s46, 0xbdd2d3e8
    s_mov_b32 s47, 0xbdd2d3e8
    v_mov_b32 v{C1}, 0xc0135761
    v_mov_b32 v{C1+1}, 0xc0135761
    v_mov_b32 v{ONE}, 1.0
    v_mov_b32 v{ONE+1}, 1.0
    s_lshl_b32 s48, s25, 3
    s_lshl_b32 s49, s24, 1
    s_add_u32 s48, s48, s49
    s_mul_i32 s48, s48, 48
    s_mul_i32 s49, s26, 3
    s_add_u32 s48, s48, s49
    s_lshl_b32 s48, s48, 10
    s_add_u32 s49, s48, 49152
    v_lshlrev_b32 v{T+1}, 4, v1
    s_waitcnt lgkmcnt(0)""")
    X, Q, OUT = T + 24, T + 32, T + 40
    for st in range(2):
        for P in range(3):
            ob = OUT + 4 * ((st * 3 + P) & 3)
            for tt in range(2):
                t = 2 * P + tt
                a = ACC + (st * 6 + t) * 4
                prs = [(a + 2 * h, CSF + 4 * t + 2 * h, B1F + 4 * t + 2 * h, X + 2 * h + 4 * tt, Q + 2 * h + 4 * tt) for h in range(2)]
                if opt.get('a_nopk', 1):
                    el = [(aa + u, cs + u, b1 + u, x + u, q + u) for (aa, cs, b1, x, q) in prs for u in range(2)]
                    for tpl in ("v_fma_f32 v{x}, v{cs}, v{nm}, v{aa}", "v_fma_f32 v{x}, v{x}, v{ri}, v{b1}",
                                "v_mul_f32 v{q}, v{x}, v{x}", "v_fma_f32 v{q}, v{q}, s46, v{c1}",
                                "v_mul_f32 v{q}, v{q}, v{x}", "v_exp_f32 v{q}, v{q}", "v_add_f32 v{q}, 1.0, v{q}",
                                "v_rcp_f32 v{q}, v{q}", "v_mul_f32 v{x}, v{x}, v{q}"):
                        for (aa, cs, b1, x, q) in el:
                            e(tpl.format(aa=aa, cs=cs, b1=b1, x=x, q=q, nm=NM + 2 * st, ri=RI + 2 * st, c1=C1))
                else:
                    for (aa, cs, b1, x, q) in prs:
                        e(f"v_pk_fma_f32 {vr(x,2)}, {vr(cs,2)}, {vr(NM+2*st,2)}, {vr(aa,2)} op_sel_hi:[1,0,1]")
                    for (aa, cs, b1, x, q) in prs:
                        e(f"v_pk_fma_f32 {vr(x,2)}, {vr(x,2)}, {vr(RI+2*st,2)}, {vr(b1,2)} op_sel_hi:[1,0,1]")
                    for (aa, cs, b1, x, q) in prs:
                        e(f"v_pk_mul_f32 {vr(q,2)}, {vr(x,2)}, {vr(x,2)}")
                    for (aa, cs, b1, x, q) in prs:
                        e(f"v_pk_fma_f32 {vr(q,2)}, {vr(q,2)}, s[46:47], {vr(C1,2)}")
                    for (aa, cs, b1, x, q) in prs:
                        e(f"v_pk_mul_f32 {vr(q,2)}, {vr(q,2)}, {vr(x,2)}")
                    for (aa, cs, b1, x, q) in prs:
                        e(f"v_exp_f32 v{q}, v{q}")
                        e(f"v_exp_f32 v{q+1}, v{q+1}")
                    for (aa, cs, b1, x, q) in prs:
                        e(f"v_pk_add_f32 {vr(q,2)}, {vr(q,2)}, {vr(ONE,2)}")
                    for (aa, cs, b1, x, q) in prs:
                        e(f"v_rcp_f32 v{q}, v{q}")
                        e(f"v_rcp_f32 v{q+1}, v{q+1}")
                    for (aa, cs, b1, x, q) in prs:
                        e(f"v_pk_mul_f32 {vr(x,2)}, {vr(x,2)}, {vr(q,2)}")
                for h, (aa, cs, b1, x, q) in enumerate(prs):
                    e(f"v_cvt_pk_bf16_f32 v{ob+2*tt+h}, v{x}, v{x+1}")
            e(f"buffer_store_dwordx4 {vr(ob,4)}, v{T+1}, s[16:19], s{48+st} offen offset:{1024*P}{SC(opt)}")
    if opt.get('a_steps'):
        e(f"""s_lshl_b32 s58, s2, 2
        s_add_u32 s58, s58, s24
        s_lshl_b32 s58, s58, 8
        s_add_u32 s58, s58, {WS_Z}
        v_lshlrev_b32 v238, 2, v1
        buffer_store_dword v239, v238, s[16:19], s58 offen""")
    if opt.get('fuse', 1):
        endp(e, 0, False)
        import kb
        kb.gemm2(e, opt)
    else:
        endp(e, 0)


def prefetch_a(e, opt):
    e("s_load_dwordx2 s[40:41], s[0:1], %d" % KA['q'])
    e("s_load_dwordx2 s[42:43], s[0:1], %d" % KA['w1'])
    e("""s_and_b32 s44, s2, 7
    s_lshr_b32 s45, s2, 3
    s_sub_u32 s46, s24, 4
    s_mul_i32 s47, s46, 48
    v_add_u32 v4, s47, v1
    s_mov_b32 s48, 5462
    v_mul_lo_u32 v5, v4, s48
    v_lshrrev_b32 v5, 16, v5
    v_mul_u32_u24 v6, 12, v5
    v_sub_u32 v6, v4, v6
    s_lshr_b32 s47, s44, 1
    s_lshl_b32 s47, s47, 9
    s_lshl_b32 s49, s45, 4
    s_add_u32 s47, s47, s49
    v_add_u32 v5, s47, v5
    v_mul_u32_u24 v5, 1280, v5
    v_lshlrev_b32 v6, 6, v6
    v_add_u32 v5, v5, v6
    v_add_u32 v5, 512, v5
    v_bfrev_b32 v7, 1
    v_cmp_gt_u32 vcc, 48, v1
    s_nop 1
    v_cndmask_b32 v5, v7, v5, vcc
    s_mul_i32 s47, s46, 72
    s_mul_i32 s49, s45, 12
    s_add_u32 s49, s49, 256
    s_and_b32 s50, s44, 1
    s_mul_i32 s50, s50, 1536
    s_mov_b32 s48, 2731""")
    for h in range(2):
        e(f"""v_add_u32 v4, s47, v1
        v_add_u32 v4, {64*h}, v4
        v_mul_lo_u32 v8, v4, s48
        v_lshrrev_b32 v8, 16, v8
        v_mul_u32_u24 v6, 24, v8
        v_sub_u32 v6, v4, v6
        v_add_u32 v8, s49, v8
        v_mul_u32_u24 v8, 3072, v8
        v_lshlrev_b32 v6, 6, v6
        v_add_u32 v8, v8, v6
        v_add_u32 v{9+h}, s50, v8""")
    e("""v_cmp_gt_u32 vcc, 8, v1
    s_nop 1
    v_cndmask_b32 v10, v7, v10, vcc
    s_waitcnt lgkmcnt(0)""")
    srd(e, 52, 40, S * 1280)
    srd(e, 56, 42, D * 3072)
    e("""buffer_load_dword v252, v5, s[52:55], 0 offen
    buffer_load_dword v253, v9, s[56:59], 0 offen
    buffer_load_dword v254, v10, s[56:59], 0 offen""")


def conv(e, opt):
    ACC = 8
    FI, UI, AL = 40, 64, 80
    e("s_load_dwordx2 s[4:5], s[0:1], %d" % KA['ssm'])
    e("s_load_dwordx2 s[6:7], s[0:1], %d" % KA['Dv'])
    e("s_load_dwordx2 s[32:33], s[0:1], %d" % KA['dbg'])
    e("""s_and_b32 s25, s2, 7
    s_lshr_b32 s26, s2, 3
    s_sub_u32 s27, s24, 4
    s_cmp_eq_u32 s27, 3
    s_cbranch_scc1 A_cend
    s_mul_i32 s28, s25, 80
    s_add_u32 s28, s28, s27
    s_cmp_ge_u32 s26, 16
    s_cbranch_scc1 A_two
    s_mul_i32 s29, s26, 3
    s_branch A_chan
    A_two:
    s_cmp_eq_u32 s27, 2
    s_cbranch_scc1 A_cend
    s_lshl_b32 s29, s26, 1
    s_add_u32 s29, s29, 16
    A_chan:
    s_add_u32 s28, s28, s29""")
    e(f"""s_mul_i32 s30, s27, {CONV_LDS}
    s_add_u32 s30, s30, {PREP}
    s_lshl_b32 s36, s28, 12
    v_lshlrev_b32 v4, 4, v1
    s_waitcnt lgkmcnt(0)""")
    srd(e, 8, 4, D * 4096)
    srd(e, 12, 6, D * 2)
    srd(e, 20, 32, 256)
    UB = 2 * 4160
    e("s_mov_b32 s37, s36")
    for q in range(4):
        e(f"buffer_load_dwordx4 {vr(FI+6*q,4)}, v4, s[8:11], s37 offen")
        e(f"buffer_load_dword v{FI+6*q+4}, v4, s[8:11], s37 offen offset:16")
        e("s_add_u32 s37, s37, 1024")
    e(f"""v_and_b32 v205, 1, v3
    v_add_u32 v200, v2, v205
    v_subrev_u32 v200, 16, v200
    v_lshlrev_b32 v201, 1, v200
    v_add_u32 v201, s36, v201
    v_cmp_gt_i32 vcc, 0, v200
    v_bfrev_b32 v202, 1
    s_nop 0
    v_cndmask_b32 v201, v201, v202, vcc
    buffer_load_ushort v204, v201, s[8:11], 0 offen
    s_lshl_b32 s38, s28, 1
    v_mov_b32 v201, s38
    buffer_load_ushort v206, v201, s[12:15], 0 offen
    v_mul_u32_u24 v202, 4160, v205
    v_lshlrev_b32 v203, 1, v2
    v_add_u32 v202, v202, v203
    v_add_u32 v202, s30, v202""")
    def lds_wait(name, addr, val, all4, sleep):
        e(f"v_mov_b32 v{SYB}, {addr}")
        e(f"{name}:")
        if all4:
            e(f"""ds_read_b128 {vr(SY0,4)}, v{SYB}
            s_waitcnt lgkmcnt(0)
            v_min3_u32 v{SY0}, v{SY0}, v{SY0+1}, v{SY0+2}
            v_min_u32 v{SY0}, v{SY0}, v{SY0+3}""")
        else:
            e(f"""ds_read_b32 v{SY0}, v{SYB}
            s_waitcnt lgkmcnt(0)""")
        e(f"""v_cmp_gt_u32 vcc, {val}, v{SY0}
        s_nop 1
        s_cbranch_vccz {name}_ok
        s_sleep {sleep}
        s_branch {name}
        {name}_ok:""")
    e("""s_cmp_lg_u32 s27, 0
    s_cbranch_scc1 A_follow""")
    e(f"""v_mov_b32 v210, 0
    s_mov_b32 s40, 0
    A_seen:
    buffer_load_dword v212, v210, s[20:23], 0 offen sc1
    s_add_u32 s40, s40, 1
    s_waitcnt vmcnt(0)
    v_readfirstlane_b32 s38, v212
    s_cmp_eq_u32 s38, 1
    s_cbranch_scc1 A_seen_ok
    s_cmp_ge_u32 s40, 0x40000
    s_cbranch_scc1 A_seen_ok
    s_sleep 8
    s_branch A_seen
    A_seen_ok:""")
    if opt.get('c_gate', 0):
        lds_wait("A_stage", SYNC + 24, opt['c_gate'], False, 4)
    else:
        lds_wait("A_stage", SYNC, opt.get('c_stage', 9) + 1, True, 2)
    e(f"""s_cmp_ge_u32 s26, 16
    s_cselect_b32 s38, 1, 2
    s_add_u32 s38, s38, s28
    s_lshr_b32 s38, s38, 6
    s_lshl_b32 s38, s38, 4
    s_lshr_b32 s39, s28, 6
    s_lshl_b32 s39, s39, 4
    v_mov_b32 v210, s38
    v_mov_b32 v211, s39
    v_and_b32 v212, 16, v1
    v_cmp_eq_u32 vcc, 0, v212
    s_mov_b32 s40, 0
    v_cndmask_b32 v210, v210, v211, vcc
    v_add_u32 v210, v210, v2
    v_lshlrev_b32 v210, 7, v210
    v_add_u32 v210, {WS_FL}, v210
    A_poll:
    s_add_u32 s40, s40, 1
    s_cmp_ge_u32 s40, 0x40000
    s_cbranch_scc1 A_ready
    buffer_load_dword v212, v210, s[16:19], 0 offen sc1
    s_waitcnt vmcnt(0)
    v_cmp_ne_u32 vcc, 1, v212
    s_nop 1
    s_cbranch_vccz A_ready
    s_sleep {opt.get('c_sleep', 8)}
    s_branch A_poll
    A_ready:
    v_mov_b32 v210, {SYNC + 20}
    v_mov_b32 v211, 1
    s_mov_b64 exec, 1
    ds_write_b32 v210, v211
    s_mov_b64 exec, -1
    s_branch A_go
    A_follow:""")
    lds_wait("A_fw", SYNC + 20, 1, False, 2)
    e("A_go:")
    stamp(e, 3)
    e(f"s_add_u32 s37, s36, {WS_U}")
    for q in range(4):
        e(f"buffer_load_dwordx4 {vr(UI+4*q,4)}, v4, s[16:19], s37 offen sc1")
        e("s_add_u32 s37, s37, 1024")
    stamp(e, 4)
    e(f"s_setprio {opt.get('c_prio', 1)}")
    e(f"""v_add_u32 v207, s30, v4
    v_lshlrev_b32 v201, 3, v1
    v_add_u32 v201, s30, v201
    v_mov_b32 v208, 0
    v_mov_b32 v209, 0
    ds_write_b64 v201, v[208:209] offset:{UB}
    s_waitcnt vmcnt(4)
    ds_write_b16 v202, v204
    v_lshlrev_b32 v7, 16, v206""")
    for q in range(4):
        f = FI + 6 * q
        a = AL + 8 * (q & 1)
        e(f"ds_write_b128 v207, {vr(f,4)} offset:{32+1024*q}")
        for k in range(4):
            e(f"v_alignbyte_b32 v{a+k}, v{f+k+1}, v{f+k}, 2")
        e(f"ds_write_b128 v207, {vr(a,4)} offset:{4160+32+1024*q}")
    e("s_waitcnt vmcnt(0)")
    for q in range(4):
        e(f"ds_write_b128 v207, {vr(UI+4*q,4)} offset:{UB+512+1024*q}")
    e(f"""v_lshlrev_b32 v201, 3, v3
    v_sub_u32 v201, v2, v201
    v_add_u32 v201, 9, v201
    v_and_b32 v203, 1, v201
    v_sub_u32 v201, v201, v203
    v_add_u32 v201, 16, v201
    v_lshlrev_b32 v201, 1, v201
    v_mul_u32_u24 v203, 4160, v203
    v_add_u32 v201, v201, v203
    v_add_u32 v212, s30, v201
    v_add_u32 v213, 1024, v212
    v_add_u32 v214, 2048, v212
    v_add_u32 v215, 3072, v212
    v_lshlrev_b32 v201, 5, v2
    v_lshlrev_b32 v203, 4, v3
    v_add_u32 v201, v201, v203
    v_add_u32 v201, s30, v201
    v_add_u32 v6, {UB+480-448}, v201""")
    for r in range(32):
        e(f"v_mov_b32 v{ACC+r}, 0")
    e("s_waitcnt lgkmcnt(0)")

    def rd(j0):
        out = []
        for i in range(8):
            a = (40 if (j0 & 1) == 0 else 104) + 4 * i
            b = (72 if (j0 & 1) == 0 else 136) + 4 * i
            out.append(f"ds_read_b128 {vr(b,4)}, v6 offset:{448 + 64*(8*i - j0)}")
            o = 128 * (i & 1) + 16 * j0
            out.append(f"ds_read2_b32 {vr(a,2)}, v{212+(i>>1)} offset0:{o} offset1:{o+1}")
            out.append(f"ds_read2_b32 {vr(a+2,2)}, v{212+(i>>1)} offset0:{o+2} offset1:{o+3}")
        return out

    for r in rd(0):
        e(r)
    for j0 in range(8):
        a0 = 40 if (j0 & 1) == 0 else 104
        b0 = 72 if (j0 & 1) == 0 else 136
        fill = rd(j0 + 1) if j0 < 7 else []
        e("s_waitcnt lgkmcnt(0)")
        n = 0
        for i in range(8):
            for c in range(i, 8):
                mfma(e, ACC + 4 * c, a0 + 4 * i, b0 + 4 * (c - i))
                if fill and n < 24:
                    e(fill.pop(0))
                n += 1
    stamp(e, 5)
    UV = 40
    e(f"""v_lshrrev_b32 v201, 1, v3
    v_lshlrev_b32 v201, 4, v201
    v_and_b32 v203, 1, v3
    v_xor_b32 v203, 1, v203
    v_lshlrev_b32 v203, 3, v203
    v_add_u32 v201, v201, v203
    v_lshlrev_b32 v203, 5, v2
    v_add_u32 v201, v201, v203
    v_add_u32 v201, s30, v201
    v_lshlrev_b32 v202, 3, v3
    v_add_u32 v202, v202, v203
    s_add_u32 s37, s36, {WS_Z}""")
    for c in range(8):
        e(f"ds_read_b64 {vr(UV+2*c,2)}, v201 offset:{UB+512+512*c}")
    e("s_waitcnt lgkmcnt(0)")
    for c in range(8):
        a, u, t = ACC + 4 * c, UV + 2 * c, 60 + 8 * (c & 1)
        e(f"""v_cvt_pk_bf16_f32 v{t}, v{a}, v{a+1}
        v_cvt_pk_bf16_f32 v{t+1}, v{a+2}, v{a+3}
        v_lshlrev_b32 v{a}, 16, v{t}
        v_and_b32 v{a+1}, 0xffff0000, v{t}
        v_lshlrev_b32 v{a+2}, 16, v{t+1}
        v_and_b32 v{a+3}, 0xffff0000, v{t+1}
        v_and_b32 v{t+2}, 0xffff0000, v{u+1}
        v_lshlrev_b32 v{t+3}, 16, v{u+1}
        v_and_b32 v{t+4}, 0xffff0000, v{u}
        v_lshlrev_b32 v{t+5}, 16, v{u}
        v_fma_f32 v{a}, v{t+2}, v7, v{a}
        v_fma_f32 v{a+1}, v{t+3}, v7, v{a+1}
        v_fma_f32 v{a+2}, v{t+4}, v7, v{a+2}
        v_fma_f32 v{a+3}, v{t+5}, v7, v{a+3}
        v_cvt_pk_bf16_f32 v{80+2*c}, v{a}, v{a+1}
        v_cvt_pk_bf16_f32 v{81+2*c}, v{a+2}, v{a+3}
        buffer_store_dwordx2 {vr(80+2*c,2)}, v202, s[16:19], s37 offen offset:{512*c}{SC(opt)}""")
    if opt.get('fuse', 1):
        e(f"""s_waitcnt vmcnt(0)
        v_mov_b32 v9, {SYNC + 28}
        v_mov_b32 v10, 1
        v_mov_b32 v12, 0
        s_mov_b64 exec, 1
        ds_add_rtn_u32 v11, v9, v10
        s_cmp_ge_u32 s26, 16
        s_cselect_b32 s39, 1, 2
        s_waitcnt lgkmcnt(0)
        v_readfirstlane_b32 s38, v11
        s_cmp_lg_u32 s38, s39
        s_cbranch_scc1 A_nozflag
        s_lshl_b32 s38, s2, 7
        s_add_u32 s38, s38, {WS_FL + 8}
        buffer_store_dword v10, v12, s[16:19], s38 offen sc1
        A_nozflag:
        s_mov_b64 exec, -1""")
    endp(e, 0)
    e("A_cend:")
    if opt.get('fuse', 1):
        e("""s_cmp_eq_u32 s24, 7
        s_cbranch_scc1 B_aux""")
    endp(e, 0)


def prep(e, opt):
    e("""s_lshl_b32 s25, s2, 2
    s_add_u32 s25, s25, s24
    s_sub_u32 s25, s25, 4
    s_sub_u32 s26, s24, 4
    s_mul_i32 s26, s26, %d""" % CONV_LDS)
    e(f"s_add_u32 s26, s26, {PREP}")
    e("s_load_dwordx2 s[34:35], s[0:1], %d" % KA['ws'])
    if opt.get('a_early', 1):
        e("s_barrier")
    if opt.get('p_prio', 0):
        e(f"s_setprio {opt['p_prio']}")
    if opt.get('a_pf', 0):
        prefetch_a(e, opt)
    e("s_cmp_ge_u32 s25, 640")
    e("s_cbranch_scc1 A_w2prep")
    e("s_load_dwordx2 s[4:5], s[0:1], %d" % KA['k'])
    e("s_load_dwordx2 s[6:7], s[0:1], %d" % KA['v'])
    e("s_load_dwordx2 s[32:33], s[0:1], %d" % KA['shift'])
    e("""s_lshr_b32 s28, s2, 4
    s_and_b32 s27, s2, 15
    s_lshl_b32 s27, s27, 2
    s_add_u32 s27, s27, s24
    s_sub_u32 s27, s27, 4
    v_lshrrev_b32 v4, 3, v1
    v_and_b32 v5, 7, v1
    s_lshl_b32 s29, s27, 5
    v_lshlrev_b32 v6, 2, v4
    v_add_u32 v6, s29, v6
    v_mul_u32_u24 v6, 1280, v6
    s_lshl_b32 s30, s28, 7
    v_lshlrev_b32 v7, 4, v5
    v_add_u32 v7, s30, v7
    v_add_u32 v6, v6, v7
    v_lshlrev_b32 v8, 2, v7
    s_waitcnt lgkmcnt(0)""")
    srd(e, 8, 4, S * 1280)
    srd(e, 12, 6, S * 1280)
    srd(e, 20, 32, D * 8)
    srd(e, 16, 34, WS_END)
    K, V, W = 16, 44, 60
    for t in range(7):
        e(f"v_add_u32 v{9}, {(t-3)*1280 & 0xffffffff}, v6")
        e(f"buffer_load_dwordx4 {vr(K+4*t,4)}, v9, s[8:11], 0 offen")
    for t in range(4):
        e(f"buffer_load_dwordx4 {vr(V+4*t,4)}, v6, s[12:15], 0 offen offset:{1280*t}")
    for t in range(4):
        e(f"buffer_load_dwordx4 {vr(W+4*t,4)}, v8, s[20:23], 0 offen offset:{16*t}")
    e("s_load_dwordx2 s[6:7], s[0:1], %d" % KA['dbg'])
    e(f"""s_cmp_lg_u32 s25, 3
    s_cbranch_scc1 A_noclr
    v_lshlrev_b32 v9, 7, v1
    v_mov_b32 v10, 0
    v_mov_b32 v11, 0
    v_mov_b32 v12, 0
    v_mov_b32 v13, 0
    s_mov_b32 s38, {WS_FL}
    buffer_store_dwordx4 v[10:13], v9, s[16:19], s38 offen sc1
    s_add_u32 s38, s38, 8192
    buffer_store_dwordx4 v[10:13], v9, s[16:19], s38 offen sc1
    s_add_u32 s38, s38, 8192
    buffer_store_dwordx4 v[10:13], v9, s[16:19], s38 offen sc1
    s_add_u32 s38, s38, 8192
    buffer_store_dwordx4 v[10:13], v9, s[16:19], s38 offen sc1
    A_noclr:
    s_waitcnt lgkmcnt(0)""")
    srd(e, 40, 6, 256)
    if not opt.get('a_early', 1):
        e("s_barrier")
    if 'p_prio2' in opt:
        e(f"s_setprio {opt['p_prio2']}")
    stamp(e, 1)
    e("s_waitcnt vmcnt(0)")
    e(f"""s_cmp_lg_u32 s25, 3
    s_cbranch_scc1 A_noann
    v_mov_b32 v9, 0
    v_mov_b32 v10, 1
    s_mov_b64 exec, 1
    buffer_store_dword v10, v9, s[40:43], 0 offen sc1
    s_mov_b64 exec, -1
    A_noann:""")
    stamp(e, 2)
    KF, WF, VF, R, PK = 80, 136, 168, 200, 232
    for t in range(7):
        for r in range(4):
            e(f"v_lshlrev_b32 v{KF+8*t+2*r}, 16, v{K+4*t+r}")
            e(f"v_and_b32 v{KF+8*t+2*r+1}, 0xffff0000, v{K+4*t+r}")
    for r in range(16):
        e(f"v_lshlrev_b32 v{WF+2*r}, 16, v{W+r}")
        e(f"v_and_b32 v{WF+2*r+1}, 0xffff0000, v{W+r}")
    if not opt.get('a_lsync', 1):
        e("s_barrier")
    for r in range(16):
        e(f"v_lshlrev_b32 v{VF+2*r}, 16, v{V+r}")
        e(f"v_and_b32 v{VF+2*r+1}, 0xffff0000, v{V+r}")
    for i in range(4):
        for j in range(4):
            for c in range(8):
                k = KF + 8 * (i + 3 - j) + c
                wv = WF + 4 * c + j
                if j == 0:
                    e(f"v_mul_f32 v{R+8*i+c}, v{k}, v{wv}")
                else:
                    e(f"v_fma_f32 v{R+8*i+c}, v{k}, v{wv}, v{R+8*i+c}")
        for c in range(8):
            e(f"v_mul_f32 v{R+8*i+c}, v{R+8*i+c}, v{VF+8*i+c}")
        if i & 1 and not opt.get('a_lsync', 1):
            e("s_barrier")
    for c in range(8):
        e(f"v_cvt_pk_bf16_f32 v{PK+2*c}, v{R+24+c}, v{R+16+c}")
        e(f"v_cvt_pk_bf16_f32 v{PK+2*c+1}, v{R+8+c}, v{R+c}")
    e("""v_lshlrev_b32 v9, 5, v5
    v_lshrrev_b32 v10, 1, v4
    v_add_u32 v9, v9, v10
    v_and_b32 v10, 1, v4
    v_xor_b32 v10, 1, v10
    v_lshlrev_b32 v10, 3, v10
    v_add_u32 v10, s26, v10""")
    for c in range(8):
        e(f"""v_add_u32 v11, {4*c}, v9
        v_xor_b32 v11, v11, v5
        v_lshlrev_b32 v11, 4, v11
        v_add_u32 v11, v11, v10
        ds_write_b64 v11, {vr(PK+2*c,2)}""")
    e(f"""v_lshlrev_b32 v9, 4, v1
    v_add_u32 v9, s26, v9
    s_lshl_b32 s30, s28, 18
    s_lshl_b32 s31, s27, 6
    s_add_u32 s30, s30, s31
    s_add_u32 s30, s30, {WS_U}
    s_waitcnt lgkmcnt(0)""")
    for q in range(4):
        e(f"ds_read_b128 {vr(16+4*q,4)}, v9 offset:{1024*q}")
    for q in range(4):
        e(f"""v_lshrrev_b32 v10, 5, v1
        v_add_u32 v10, {2*q}, v10
        v_add_u32 v11, {64*q}, v1
        v_xor_b32 v11, v11, v10
        v_lshrrev_b32 v10, 2, v11
        v_and_b32 v11, 3, v11
        v_lshlrev_b32 v10, 12, v10
        v_lshlrev_b32 v11, 4, v11
        v_add_u32 v{40+q}, v10, v11""")
    for q in range(4):
        e(f"s_waitcnt lgkmcnt({3-q})")
        e(f"buffer_store_dwordx4 {vr(16+4*q,4)}, v{40+q}, s[16:19], s30 offen sc1")
    e(f"""s_mov_b32 s49, {WS_FL}
    A_post:
    v_mov_b32 v12, 0
    buffer_load_dword v13, v12, s[40:43], 0 offen sc1
    s_waitcnt vmcnt(0)
    v_mov_b32 v9, {SYNC + 16}
    v_mov_b32 v10, 1
    s_mov_b64 exec, 1
    ds_add_rtn_u32 v11, v9, v10
    s_waitcnt lgkmcnt(0)
    v_readfirstlane_b32 s38, v11
    s_cmp_lg_u32 s38, 3
    s_cbranch_scc1 A_noflag
    s_mov_b32 s39, 0
    A_clr:
    v_readfirstlane_b32 s38, v13
    s_cmp_eq_u32 s38, 1
    s_cbranch_scc1 A_flag
    s_add_u32 s39, s39, 1
    s_cmp_ge_u32 s39, 0x40000
    s_cbranch_scc1 A_flag
    s_sleep 8
    buffer_load_dword v13, v12, s[40:43], 0 offen sc1
    s_waitcnt vmcnt(0)
    s_branch A_clr
    A_flag:
    s_lshl_b32 s38, s2, 7
    s_add_u32 s38, s38, s49
    buffer_store_dword v10, v12, s[16:19], s38 offen sc1
    A_noflag:
    s_mov_b64 exec, -1
    s_branch A_conv""")
    e("A_w2prep:")
    e("s_load_dwordx2 s[4:5], s[0:1], %d" % KA['w2'])
    e("s_load_dwordx2 s[6:7], s[0:1], %d" % KA['dbg'])
    e("""s_sub_u32 s25, s25, 640
    s_mul_i32 s27, s25, 1366
    s_lshr_b32 s27, s27, 16
    s_mul_i32 s28, s27, 48
    s_sub_u32 s28, s25, s28
    s_mul_i32 s29, s28, 40960
    s_mul_i32 s30, s27, 160
    s_add_u32 s29, s29, s30
    s_mov_b32 s38, 6554
    s_waitcnt lgkmcnt(0)""")
    srd(e, 8, 4, F * 1280)
    srd(e, 16, 34, WS_END)
    srd(e, 40, 6, 256)
    for q in range(5):
        e(f"""v_add_u32 v4, {64*q}, v1
        v_mul_lo_u32 v5, v4, s38
        v_lshrrev_b32 v5, 16, v5
        v_mul_u32_u24 v6, 10, v5
        v_sub_u32 v6, v4, v6
        v_mul_u32_u24 v5, 1280, v5
        v_lshlrev_b32 v6, 4, v6
        v_add_u32 v5, v5, v6
        s_add_u32 m0, s26, {1024*q}
        s_nop 0
        buffer_load_dwordx4 v5, s[8:11], s29 offen lds""")
    if not opt.get('a_early', 1):
        e("s_barrier")
    e(f"""v_bfe_u32 v4, v1, 2, 2
    v_lshlrev_b32 v5, 2, v3
    v_add_u32 v4, v4, v5
    v_mul_u32_u24 v4, 160, v4
    v_and_b32 v5, 3, v1
    v_lshlrev_b32 v5, 3, v5
    v_add_u32 v4, v4, v5
    v_add_u32 v4, s26, v4
    s_mul_i32 s30, s25, 5120
    s_add_u32 s30, s30, {WS_W2}
    v_lshlrev_b32 v6, 4, v1
    v_add_u32 v7, 4096, v6
    s_waitcnt vmcnt(0)""")
    for t in range(5):
        for h in range(2):
            e(f"ds_read_b64_tr_b16 {vr(16+4*t+2*h,2)}, v4 offset:{32*t+2560*h}")
    e("s_waitcnt lgkmcnt(0)")
    for t in range(5):
        e(f"buffer_store_dwordx4 {vr(16+4*t,4)}, v{7 if t==4 else 6}, s[16:19], s30 offen offset:{0 if t==4 else 1024*t}{SC(opt)}")
    if opt.get('fuse', 1):
        e(f"""s_mov_b32 s49, {WS_FL + 12}
        s_branch A_post""")
    e("s_waitcnt vmcnt(0)")
    e("A_conv:")
    conv(e, opt)


def kernel_a(e, label, opt):
    e(f".globl {label}\n.p2align 8\n.type {label},@function\n{label}:")
    e("""s_cmp_ge_u32 s2, 256
    s_cbranch_scc1 A_exit
    v_lshrrev_b32 v1, 6, v0
    s_nop 0
    v_readfirstlane_b32 s24, v1
    v_and_b32 v1, 63, v0
    v_and_b32 v2, 15, v1
    v_lshrrev_b32 v3, 4, v1
    s_nop 1
    """)
    stamp(e, 0)
    e("""s_cmp_ge_u32 s24, 4
    s_cbranch_scc1 A_prep""")
    gemm1(e, opt)
    e("A_prep:")
    prep(e, opt)
    if opt.get('fuse', 1):
        import kb
        e("B_aux:")
        kb.aux(e, opt)
    e("A_exit:")
    e("s_endpgm")
```

```python
from common import *

XCH = 0
ZT = XCH + 12 * 5120
LDS_B = 90112


SYNC = 114688 + 384
S_GO, S_HCNT, S_HRDY, S_ZRDY, S_WRDY = SYNC + 20, SYNC + 24, SYNC + 32, SYNC + 36, SYNC + 40


def lds_wait(e, name, addr, val, sleep):
    e(f"""v_mov_b32 v249, {addr}
    {name}:
    ds_read_b32 v244, v249
    s_waitcnt lgkmcnt(0)
    v_cmp_gt_u32 vcc, {val}, v244
    s_nop 1
    s_cbranch_vccz {name}_ok
    s_sleep {sleep}
    s_branch {name}
    {name}_ok:""")


def lds_set(e, addr, val):
    e(f"""v_mov_b32 v248, {addr}
    v_mov_b32 v250, {val}
    s_mov_b64 exec, 1
    ds_write_b32 v248, v250
    s_mov_b64 exec, -1""")


def poll(e, name, vaddr, sleep):
    e(f"""s_mov_b32 s40, 0
    {name}:
    s_add_u32 s40, s40, 1
    s_cmp_ge_u32 s40, 0x40000
    s_cbranch_scc1 {name}_ok
    buffer_load_dword v245, v{vaddr}, s[16:19], 0 offen sc1
    s_waitcnt vmcnt(0)
    v_cmp_ne_u32 vcc, 1, v245
    s_nop 1
    s_cbranch_vccz {name}_ok
    s_sleep {sleep}
    s_branch {name}
    {name}_ok:""")


def gemm2(e, opt):
    ACC, PIPE, T = 8, 88, 232
    fuse = opt.get('fuse', 1)
    if fuse:
        stamp(e, 0)
        e(f"s_setprio {opt.get('b_prio', 0)}")
    e("s_load_dwordx2 s[34:35], s[0:1], %d" % KA['ws'])
    e("s_load_dwordx2 s[4:5], s[0:1], %d" % KA['q'])
    e("s_load_dwordx2 s[6:7], s[0:1], %d" % KA['b2'])
    e("s_load_dwordx2 s[32:33], s[0:1], %d" % KA['out'])
    e("""s_and_b32 s27, s2, 7
    s_lshr_b32 s28, s2, 3
    s_and_b32 s25, s27, 1
    s_lshl_b32 s25, s25, 2
    s_and_b32 s29, s28, 3
    s_add_u32 s25, s25, s29
    s_lshr_b32 s26, s27, 1
    s_lshl_b32 s26, s26, 3
    s_lshr_b32 s29, s28, 2
    s_add_u32 s26, s26, s29
    s_mul_i32 s36, s24, 12""")
    for sl in range(4):
        e(f"""s_add_u32 s29, s24, {sl}
        s_and_b32 s29, s29, 3
        s_lshl_b32 s30, s26, 2
        s_add_u32 s29, s29, s30
        s_mul_i32 s29, s29, 48
        s_add_u32 s29, s29, s36
        s_lshl_b32 s{40+sl}, s29, 10""")
    rot = opt.get('b_rot', 0)
    if rot:
        e(f"""s_and_b32 s45, s28, 3
        s_mul_i32 s45, s45, {rot}
        s_lshr_b32 s46, s28, 2
        s_mul_i32 s46, s46, {opt.get('b_rot2', 1)}
        s_add_u32 s45, s45, s46
        s_cmp_ge_u32 s45, 12
        s_cselect_b32 s46, 12, 0
        s_sub_u32 s45, s45, s46
        s_cmp_ge_u32 s45, 12
        s_cselect_b32 s46, 12, 0
        s_sub_u32 s45, s45, s46
        s_lshl_b32 s46, s45, 10
        s_add_u32 s40, s40, s46
        s_add_u32 s41, s41, s46
        s_add_u32 s42, s42, s46
        s_add_u32 s43, s43, s46
        s_add_u32 s36, s36, s45
        s_mov_b32 s47, {(1024 - 12288) & 0xffffffff}
        s_mov_b32 s48, 1024
        s_mov_b32 s50, {(5120 - 61440) & 0xffffffff}
        s_mov_b32 s51, 5120""")
    e(f"""s_mul_i32 s29, s25, 48
    s_add_u32 s29, s29, s36
    s_mul_i32 s44, s29, 5120
    s_add_u32 s44, s44, {WS_W2}
    v_lshlrev_b32 v4, 4, v1
    v_add_u32 v5, 4096, v4
    s_waitcnt lgkmcnt(0)""")
    srd(e, 16, 34, WS_END)
    srd(e, 8, 4, S * 1280)
    srd(e, 12, 6, D * 2)
    srd(e, 20, 32, S * 1280)

    def loads(k):
        b = PIPE + (k & 3) * 36
        out = []
        for t in range(5):
            out.append([f"buffer_load_dwordx4 {vr(b+16+4*t,4)}, v{5 if t==4 else 4}, s[16:19], s44 offen offset:{0 if t==4 else 1024*t}"])
        out[-1].append("s_add_u32 s44, s44, " + ("s49" if rot else "5120"))
        if rot:
            out[0] = ["s_add_u32 s45, s45, 1", "s_cmp_eq_u32 s45, 12", "s_cselect_b32 s46, s47, s48",
                      "s_cselect_b32 s49, s50, s51"] + out[0]
        for sl in range(4):
            out.append([f"buffer_load_dwordx4 {vr(b+4*sl,4)}, v4, s[16:19], s{40+sl} offen",
                        f"s_add_u32 s{40+sl}, s{40+sl}, " + ("s46" if rot else "1024")])
        return out

    if fuse:
        e(f"""s_waitcnt vmcnt(0)
        v_mov_b32 v248, {S_HCNT}
        v_mov_b32 v250, 1
        s_mov_b64 exec, 1
        ds_add_rtn_u32 v244, v248, v250
        s_waitcnt lgkmcnt(0)
        v_readfirstlane_b32 s38, v244
        s_cmp_lg_u32 s38, 3
        s_cbranch_scc1 B_nohflag""")
        lds_wait(e, "B_hgo", S_GO, 1, 2)
        e(f"""v_mov_b32 v246, 0
        s_lshl_b32 s38, s2, 7
        s_add_u32 s38, s38, {WS_FL + 4}
        buffer_store_dword v250, v246, s[16:19], s38 offen sc1
        B_nohflag:
        s_mov_b64 exec, -1""")
        lds_wait(e, "B_wrdy", S_WRDY, 1, 2)
        pro = [loads(k) for k in range(3)]
        for g in pro:
            for x in g[:5]:
                e("\n".join(x))
        for r in range(80):
            e(f"v_mov_b32 v{ACC+r}, 0")
        stamp(e, 1)
        lds_wait(e, "B_hrdy", S_HRDY, 1, opt.get('b_hsleep', 1))
        stamp(e, 2)
        for g in pro:
            for x in g[5:]:
                e("\n".join(x))
    else:
        for k in range(3):
            for g in loads(k):
                e("\n".join(g))
        for r in range(80):
            e(f"v_mov_b32 v{ACC+r}, 0")
        stamp(e, 1)
    for k in range(12):
        b = PIPE + (k & 3) * 36
        fill = loads(k + 3) if k + 3 < 12 else []
        e(f"s_waitcnt vmcnt({[8, 13][k] if fuse and k < 2 else 9*min(2, 11-k)})")
        n = 0
        for t in range(5):
            for sl in range(4):
                mfma(e, ACC + (sl * 5 + t) * 4, b + 16 + 4 * t, b + 4 * sl)
                if n & 1 and fill:
                    e("\n".join(fill.pop(0)))
                n += 1
        for g in fill:
            e("\n".join(g))
    stamp(e, 3)
    XV, B2, STV, PB = 88, 98, 108, 112
    e(f"""s_lshl_b32 s45, s26, 6
    s_lshl_b32 s46, s24, 4
    s_add_u32 s45, s45, s46
    v_add_u32 v6, s45, v2
    v_lshlrev_b32 v7, 3, v6
    v_add_u32 v7, {WS_ST}, v7
    v_mul_u32_u24 v6, 1280, v6
    s_mul_i32 s47, s25, 160
    v_lshlrev_b32 v{T}, 3, v3
    v_add_u32 v{T}, s47, v{T}
    v_add_u32 v6, v6, v{T}""")
    for t in range(5):
        e(f"buffer_load_dwordx2 {vr(XV+2*t,2)}, v6, s[8:11], 0 offen offset:{32*t}")
    for t in range(5):
        e(f"buffer_load_dwordx2 {vr(B2+2*t,2)}, v{T}, s[12:15], 0 offen offset:{32*t}")
    e(f"buffer_load_dwordx2 {vr(STV,2)}, v7, s[16:19], 0 offen")
    e("s_nop 4")
    for sl in range(1, 4):
        e(f"""s_add_u32 s29, s24, {sl}
        s_and_b32 s29, s29, 3
        s_mul_i32 s29, s29, 15360
        s_add_u32 s29, s29, {XCH + (sl-1)*5120}
        v_add_u32 v{T+1}, s29, v4""")
        for t in range(5):
            e(f"ds_write_b128 v{T+1}, {vr(ACC+(sl*5+t)*4,4)} offset:{1024*t}")
    e(f"""s_mul_i32 s29, s24, 15360
    s_add_u32 s29, s29, {XCH}
    v_add_u32 v{T+1}, s29, v4
    v_bfe_u32 v{T+2}, v1, 2, 2
    v_lshlrev_b32 v{T+3}, 2, v3
    v_add_u32 v{T+2}, v{T+2}, v{T+3}
    v_lshlrev_b32 v{T+2}, 7, v{T+2}
    v_and_b32 v{T+3}, 3, v1
    v_lshlrev_b32 v{T+3}, 3, v{T+3}
    v_add_u32 v{T+2}, v{T+2}, v{T+3}
    s_lshl_b32 s29, s24, 5
    s_add_u32 s29, s29, {ZT}
    v_add_u32 v{T+2}, s29, v{T+2}
    s_waitcnt lgkmcnt(0)""")
    stamp(e, 4)
    if fuse:
        e(f"""s_lshl_b32 s29, s24, 2
        s_add_u32 s29, s29, {SYNC}
        v_mov_b32 v248, s29
        v_mov_b32 v250, 13
        v_mov_b32 v249, {SYNC}
        s_mov_b64 exec, 1
        ds_write_b32 v248, v250
        s_mov_b64 exec, -1
        B_xw:
        ds_read_b128 v[244:247], v249
        ds_read_b32 v251, v249 offset:{S_ZRDY - SYNC}
        s_waitcnt lgkmcnt(0)
        v_min3_u32 v244, v244, v245, v246
        v_min3_u32 v244, v244, v247, v251
        v_cmp_gt_u32 vcc, 13, v244
        s_nop 1
        s_cbranch_vccnz B_xw""")
    else:
        e("s_barrier")
    stamp(e, 5)
    for j in range(3):
        for t in range(5):
            e(f"ds_read_b128 {vr(PB+(j*5+t)*4,4)}, v{T+1} offset:{j*5120+1024*t}")
        if j == 1:
            e("s_waitcnt lgkmcnt(5)")
            for r in range(20):
                e(f"v_add_f32 v{ACC+r}, v{ACC+r}, v{PB+r}")
    ZV = PB + 60
    for t in range(5):
        e(f"ds_read_b64_tr_b16 {vr(ZV+2*t,2)}, v{T+2} offset:{2048*t}")
    e("s_waitcnt lgkmcnt(10)")
    for r in range(20):
        e(f"v_add_f32 v{ACC+r}, v{ACC+r}, v{PB+20+r}")
    e("s_waitcnt lgkmcnt(5)")
    for r in range(20):
        e(f"v_add_f32 v{ACC+r}, v{ACC+r}, v{PB+40+r}")
    e("s_waitcnt vmcnt(0) lgkmcnt(0)")
    A, Bq, Cq, OUT = PB, PB + 4, PB + 8, PB + 16
    for t in range(5):
        for h in range(2):
            e(f"""v_lshlrev_b32 v{A+2*h}, 16, v{XV+2*t+h}
            v_and_b32 v{A+2*h+1}, 0xffff0000, v{XV+2*t+h}
            v_lshlrev_b32 v{Bq+2*h}, 16, v{ZV+2*t+h}
            v_and_b32 v{Bq+2*h+1}, 0xffff0000, v{ZV+2*t+h}
            v_lshlrev_b32 v{Cq+2*h}, 16, v{B2+2*t+h}
            v_and_b32 v{Cq+2*h+1}, 0xffff0000, v{B2+2*t+h}""")
        for r in range(4):
            a = ACC + 4 * t + r
            e(f"""v_add_f32 v{a}, v{a}, v{Cq+r}
            v_add_f32 v{a}, v{a}, v{A+r}
            v_sub_f32 v{A+r}, v{A+r}, v{STV}
            v_mul_f32 v{A+r}, v{A+r}, v{STV+1}""")
        for h in range(2):
            e(f"v_cvt_pk_bf16_f32 v{A+2*h}, v{A+2*h}, v{A+2*h+1}")
        for h in range(2):
            e(f"""v_and_b32 v{A+2*h+1}, 0xffff0000, v{A+2*h}
            v_lshlrev_b32 v{A+2*h}, 16, v{A+2*h}""")
        for r in range(4):
            a = ACC + 4 * t + r
            e(f"v_fma_f32 v{a}, v{A+r}, v{Bq+r}, v{a}")
        for h in range(2):
            a = ACC + 4 * t + 2 * h
            e(f"v_cvt_pk_bf16_f32 v{OUT+2*t+h}, v{a}, v{a+1}")
        e(f"buffer_store_dwordx2 {vr(OUT+2*t,2)}, v6, s[20:23], 0 offen offset:{32*t}")
    endp(e, 1)


def aux(e, opt):
    fuse = opt.get('fuse', 1)
    if fuse:
        stamp(e, 0)
        e("s_setprio 3")
    e("s_load_dwordx2 s[34:35], s[0:1], %d" % KA['ws'])
    e("""s_and_b32 s27, s2, 7
    s_lshr_b32 s28, s2, 3
    s_and_b32 s25, s27, 1
    s_lshl_b32 s25, s25, 2
    s_and_b32 s29, s28, 3
    s_add_u32 s25, s25, s29
    s_lshr_b32 s26, s27, 1
    s_lshl_b32 s26, s26, 3
    s_lshr_b32 s29, s28, 2
    s_add_u32 s26, s26, s29
    s_waitcnt lgkmcnt(0)""")
    srd(e, 16, 34, WS_END)
    e(f"""v_lshrrev_b32 v6, 3, v1
    v_lshlrev_b32 v6, 12, v6
    v_and_b32 v7, 7, v1
    v_lshlrev_b32 v7, 4, v7
    v_add_u32 v6, v6, v7
    s_mul_i32 s30, s25, {80*4096}
    s_lshl_b32 s31, s26, 7
    s_add_u32 s30, s30, s31
    s_add_u32 s30, s30, {WS_Z}""")
    if fuse:
        lds_wait(e, "B_ago", S_GO, 1, 8)
        e(f"""s_mul_i32 s29, s25, 12
        s_add_u32 s29, s29, 160
        v_min_u32 v8, 11, v1
        v_add_u32 v8, s29, v8
        v_lshlrev_b32 v8, 7, v8
        v_add_u32 v8, {WS_FL + 12}, v8
        s_lshr_b32 s28, s26, 1
        s_lshr_b32 s29, s28, 2
        s_lshl_b32 s29, s29, 1
        s_and_b32 s28, s28, 3
        v_bfe_u32 v9, v1, 3, 1
        v_add_u32 v9, s29, v9
        v_and_b32 v10, 7, v1
        v_lshlrev_b32 v10, 2, v10
        v_add_u32 v10, s28, v10
        v_lshlrev_b32 v10, 3, v10
        v_add_u32 v9, v9, v10
        v_lshlrev_b32 v9, 7, v9
        v_add_u32 v9, {WS_FL + 4}, v9
        v_and_b32 v10, 31, v1
        v_lshlrev_b32 v10, 3, v10
        v_add_u32 v10, s25, v10
        v_lshlrev_b32 v10, 7, v10
        v_add_u32 v10, {WS_FL + 8}, v10""")
        poll(e, "B_pw", 8, 8)
        lds_set(e, S_WRDY, 1)
        if opt.get('b_pfw', 1):
            e(f"""s_lshr_b32 s28, s2, 5
            s_mul_i32 s28, s28, 30720
            s_mul_i32 s29, s25, 245760
            s_add_u32 s28, s28, s29
            s_add_u32 s28, s28, {WS_W2}
            v_lshlrev_b32 v11, 7, v1""")
            for q in range(4):
                e(f"""buffer_load_dword v{12+q}, v11, s[16:19], s28 offen
                s_add_u32 s28, s28, 8192""")
        lds_wait(e, "B_own", S_HCNT, 4, 2)
        poll(e, "B_ph", 9, opt.get('b_psleep', 1))
        lds_set(e, S_HRDY, 1)
        stamp(e, 1)
        poll(e, "B_pz", 10, opt.get('b_psleep', 1))
        stamp(e, 2)
    for q in range(10):
        e(f"""s_mov_b32 m0, {ZT+1024*q}
        s_nop 0
        buffer_load_dwordx4 v6, s[16:19], s30 offen lds
        s_add_u32 s30, s30, {8*4096}""")
    e("s_waitcnt vmcnt(0)")
    stamp(e, 4)
    if fuse:
        lds_set(e, S_ZRDY, 13)
    else:
        e("s_barrier")
    endp(e, 1)


def kernel_b(e, label, opt):
    e(f".globl {label}\n.p2align 8\n.type {label},@function\n{label}:")
    e(f"""s_cmp_ge_u32 s2, 256
    s_cbranch_scc1 B_exit
    v_lshrrev_b32 v1, 6, v0
    s_nop 0
    v_readfirstlane_b32 s24, v1
    v_and_b32 v1, 63, v0
    v_and_b32 v2, 15, v1
    v_lshrrev_b32 v3, 4, v1
    s_nop 1""")
    stamp(e, 0)
    e("""s_cmp_eq_u32 s24, 4
    s_cbranch_scc1 B_aux""")
    gemm2(e, opt)
    e("B_aux:")
    aux(e, opt)
    e("B_exit:")
    e("s_endpgm")
```

```python
import sys, json, os
sys.path.insert(0, os.path.dirname(os.path.abspath(__file__)))
from common import *
import ka, kb

def build(opt):
    PROF['on'] = bool(opt.get('prof'))
    ref = open(f"cdna_kernels/{NAME}.s.ref").read().split("\n")
    hdr = []
    for ln in ref:
        if ln.startswith("; Override launch geometry"):
            break
        hdr.append(ln)
    la, lb = f"{NAME}_kernel", f"{NAME}_b_kernel"
    hdr.append(f"; @launch kernel={la} grid=(256,1,1) block=(512,1,1) lds={ka.LDS_A}")
    fuse = opt.get('fuse', 1)
    if fuse and opt.get('plain', 0 if opt.get('prof') else 1):
        hdr[-1] = f"; @launch grid=(256,1,1) block=(512,1,1) lds={ka.LDS_A}"
    if not fuse:
        hdr.append(f"; @launch kernel={lb} grid=(256,1,1) block=(320,1,1) lds={kb.LDS_B}")
    e = Asm()
    e('.amdgcn_target "amdgcn-amd-amdhsa--gfx950"')
    e(".text")
    ka.kernel_a(e, la, opt)
    if not fuse:
        kb.kernel_b(e, lb, opt)
    body = e.text().replace("    .amdgcn_target", ".amdgcn_target").replace("    .text", ".text")
    return "\n".join(hdr) + "\n" + body + '.section .rodata,"a"\n.p2align 6\n' + kernel_desc(la) + ("" if fuse else ".p2align 6\n" + kernel_desc(lb))

if __name__ == "__main__":
    out = sys.argv[1] if len(sys.argv) > 1 else f"cdna_kernels/{NAME}.s"
    opt = json.loads(sys.argv[2]) if len(sys.argv) > 2 else {}
    open(out, "w").write(build(opt))
    print("wrote", out, ka.LDS_A, kb.LDS_B)
```

```python
from common import *
CONV_LDS = 12928

ACC, CS, AF, BF = 16, 64, 88, 136
SUM, ONES, VW, VXD, VX0, VX1, VE, VO, B1 = 152, 156, 160, 163, 164, 165, 166, 167, 168
T = 180
SS, SG = 236, 244
XR = 49152
CST = 114688
PREP = 115200
LDS_A = PREP + 3 * CONV_LDS + 5120
SYNC = CST + 384
SY0, SYS, SYB, SYV = 228, 232, 233, 234


def SC(opt):
    return " sc1" if opt.get('fuse', 1) else ""


def arrive(e, val):
    e(f"""v_mov_b32 v{SYV}, {val}
    s_mov_b64 exec, 1
    ds_write_b32 v{SYS}, v{SYV}
    s_mov_b64 exec, -1""")


def peek(e):
    e(f"ds_read_b128 {vr(SY0,4)}, v{SYB}")


def await_all(e, val, peeked=True):
    again, done = e.label("sy"), e.label("sd")
    if not peeked:
        e(f"{again}:")
        peek(e)
    body = f"""s_waitcnt lgkmcnt(0)
    v_min3_u32 v{SY0}, v{SY0}, v{SY0+1}, v{SY0+2}
    v_min_u32 v{SY0}, v{SY0}, v{SY0+3}
    v_cmp_gt_u32 vcc, {val}, v{SY0}
    s_nop 1"""
    e(body)
    if not peeked:
        e(f"s_cbranch_vccnz {again}")
        return
    e(f"s_cbranch_vccz {done}")
    e(f"{again}:")
    peek(e)
    e(body)
    e(f"s_cbranch_vccnz {again}")
    e(f"{done}:")


def gemm1(e, opt):
    e(f"s_setprio {opt.get('a_prio', 2)}")
    if opt.get('a_early', 1):
        e(f"""v_lshlrev_b32 v{T}, 4, v1
        v_add_u32 v{T}, {CST}, v{T}
        v_mov_b32 v{T+4}, 0
        v_mov_b32 v{T+5}, 0
        v_mov_b32 v{T+6}, 0
        v_mov_b32 v{T+7}, 0
        v_cmp_gt_u32 vcc, 32, v0
        s_nop 1
        s_and_saveexec_b64 s[42:43], vcc
        s_cbranch_execz A_nozero0
        ds_write_b128 v{T}, {vr(T+4,4)}
        A_nozero0:
        s_mov_b64 exec, -1
        s_waitcnt lgkmcnt(0)
        s_barrier""")
    e("s_load_dwordx2 s[4:5], s[0:1], %d" % KA['q'])
    e("s_load_dwordx2 s[6:7], s[0:1], %d" % KA['w1'])
    e("s_load_dwordx2 s[32:33], s[0:1], %d" % KA['b1'])
    e("s_load_dwordx2 s[34:35], s[0:1], %d" % KA['ws'])
    e("""s_and_b32 s27, s2, 7
    s_lshr_b32 s28, s2, 3
    s_lshr_b32 s25, s27, 1
    s_lshl_b32 s25, s25, 2
    s_and_b32 s29, s28, 3
    s_add_u32 s25, s25, s29
    s_and_b32 s26, s27, 1
    s_lshl_b32 s26, s26, 3
    s_lshr_b32 s29, s28, 2
    s_add_u32 s26, s26, s29
    s_mul_i32 s30, s24, 3072
    s_lshl_b32 s31, s24, 12""")
    e("s_mul_i32 s36, s24, 192")
    e("s_mul_i32 s37, s26, 192")
    e("s_mov_b32 s38, 43691")
    for ii in range(3):
        e(f"""v_add_u32 v{T}, s36, v1
        v_add_u32 v{T}, {64*ii}, v{T}
        v_mul_lo_u32 v{T+1}, v{T}, s38
        v_lshrrev_b32 v{T+1}, 19, v{T+1}
        v_mul_u32_u24 v{T+2}, 12, v{T+1}
        v_sub_u32 v{T+2}, v{T}, v{T+2}
        v_lshrrev_b32 v{T+3}, 2, v{T+1}
        v_and_b32 v{T+3}, 2, v{T+3}
        v_xor_b32 v{T+2}, v{T+2}, v{T+3}
        v_lshlrev_b32 v{T+2}, 4, v{T+2}
        v_mul_u32_u24 v{T+1}, 3072, v{T+1}
        v_add_u32 v{T+1}, v{T+1}, v{T+2}
        v_add_u32 v{VW+ii}, s37, v{T+1}""")
    e(f"""s_lshl_b32 s39, s25, 7
    s_lshl_b32 s40, s24, 5
    s_add_u32 s39, s39, s40
    v_lshrrev_b32 v{T}, 3, v1
    v_and_b32 v{T+1}, 7, v1
    v_xor_b32 v{T+1}, v{T+1}, v{T}
    v_lshlrev_b32 v{T+1}, 4, v{T+1}
    v_add_u32 v{T}, s39, v{T}
    v_mul_u32_u24 v{T}, 1280, v{T}
    v_add_u32 v{VXD}, v{T}, v{T+1}""")
    e(f"""v_and_b32 v{T}, 7, v2
    v_xor_b32 v{T}, v{T}, v3
    v_lshlrev_b32 v{T}, 4, v{T}
    v_lshlrev_b32 v{T+1}, 7, v2
    v_add_u32 v{T}, v{T}, v{T+1}
    v_add_u32 v{T}, s31, v{T}
    v_add_u32 v{VX0}, {XR}, v{T}
    v_xor_b32 v{VX1}, 64, v{VX0}
    v_bfe_u32 v{T}, v1, 2, 2
    v_lshlrev_b32 v{T+1}, 3, v3
    v_add_u32 v{T}, v{T}, v{T+1}
    v_mul_u32_u24 v{T}, 192, v{T}
    v_and_b32 v{T+1}, 3, v1
    v_lshlrev_b32 v{T+1}, 3, v{T+1}
    v_add_u32 v{T}, v{T}, v{T+1}
    v_and_b32 v{T+1}, 1, v3
    v_lshlrev_b32 v{T+1}, 5, v{T+1}
    v_add_u32 v{VE}, v{T}, v{T+1}
    v_sub_u32 v{VO}, v{T}, v{T+1}""")
    e("s_waitcnt lgkmcnt(0)")
    srd(e, 8, 4, S * 1280)
    srd(e, 12, 6, D * 3072)
    srd(e, 16, 34, WS_END)
    srd(e, 20, 32, F * 2)
    e(f"""v_lshlrev_b32 v{T}, 3, v3
    v_add_u32 v{T}, s37, v{T}""")
    for t in range(6):
        e(f"buffer_load_dwordx2 {vr(B1+2*t,2)}, v{T}, s[20:23], 0 offen offset:{32*t}")

    def dma(p):
        out = []
        sg = p & 3
        for ii in range(3):
            out.append([f"s_add_u32 m0, s30, {sg*12288+ii*1024}", f"s_mov_b32 s41, {196608*p}",
                        f"buffer_load_dwordx4 v{VW+ii}, s[12:15], s41 offen lds"])
        for q in range(4):
            out.append([f"s_add_u32 m0, s31, {XR+sg*16384+q*1024}", f"s_mov_b32 s41, {10240*q+128*p}",
                        f"buffer_load_dwordx4 v{VXD}, s[8:11], s41 offen lds"])
        return out

    def reads(step):
        p, kk = step >> 1, step & 1
        sg, buf = p & 3, step & 1
        out = []
        for st in range(2):
            out.append(f"ds_read_b128 {vr(BF+buf*8+st*4,4)}, v{VX1 if kk else VX0} offset:{sg*16384+st*2048}")
        for t in range(6):
            for h in range(2):
                out.append(f"ds_read_b64_tr_b16 {vr(AF+buf*24+t*4+h*2,2)}, v{VO if t&1 else VE} "
                           f"offset:{sg*12288+192*(32*kk+4*h)+32*t}")
        return out

    for p in range(4):
        for g in dma(p):
            e("\n".join(g))
    for r in range(ACC, ACC + 72):
        e(f"v_mov_b32 v{r}, 0")
    for r in range(16):
        e(f"v_mov_b32 v{SS+r}, 0")
    for r in range(4):
        e(f"v_mov_b32 v{ONES+r}, 0x3f803f80")
    e(f"""v_mov_b32 v{SYB}, {SYNC}
    s_lshl_b32 s42, s24, 2
    v_add_u32 v{SYS}, s42, v{SYB}""")
    if opt.get('a_early', 1):
        e("s_waitcnt vmcnt(21)")
        stamp(e, 1)
        arrive(e, 1)
        await_all(e, 1, peeked=False)
    else:
        e(f"""v_lshlrev_b32 v{T}, 4, v1
        v_add_u32 v{T}, {CST}, v{T}
        v_mov_b32 v{T+4}, 0
        v_mov_b32 v{T+5}, 0
        v_mov_b32 v{T+6}, 0
        v_mov_b32 v{T+7}, 0
        v_cmp_gt_u32 vcc, 32, v0
        s_nop 1
        s_and_saveexec_b64 s[42:43], vcc
        s_cbranch_execz A_nozero
        ds_write_b128 v{T}, {vr(T+4,4)}
        A_nozero:
        s_mov_b64 exec, -1
        s_waitcnt vmcnt(21) lgkmcnt(0)""")
        stamp(e, 1)
        e("s_barrier")
    stamp(e, 2)
    for r in reads(0):
        e(r)
    for step in range(20):
        p, kk = step >> 1, step & 1
        buf = step & 1
        e("s_waitcnt lgkmcnt(0)")
        if opt.get('a_steps') and step > 0:
            e(f"v_writelane_b32 v239, s56, {step}")
        ms = [(ACC + (st * 6 + t) * 4, AF + buf * 24 + t * 4, BF + buf * 8 + st * 4) for t in range(6) for st in range(2)]
        stat = []
        for st in range(2):
            stat.append((SS + 4 * st, ONES, BF + buf * 8 + st * 4))
            stat.append((SG + 4 * st, BF + buf * 8 + st * 4, BF + buf * 8 + st * 4))
        pre = opt.get('a_pre', 4)
        ms = stat + ms
        ls = opt.get('a_lsync', 1)
        if ls and kk == 1 and p < 9:
            p1, p2 = opt.get('a_p1', 4), opt.get('a_p2', 8)
            p0 = opt.get('a_p0', 0)
            for (d, a, b) in ms[:p0]:
                mfma(e, d, a, b)
            e(f"s_waitcnt vmcnt({7*(min(p+3,9)-(p+1))})")
            arrive(e, p + 2)
            for (d, a, b) in ms[p0:p1]:
                mfma(e, d, a, b)
            peek(e)
            for (d, a, b) in ms[p1:p2]:
                mfma(e, d, a, b)
            await_all(e, p + 2)
            pre = p2
        else:
            for (d, a, b) in ms[:pre]:
                mfma(e, d, a, b)
        if not ls and kk == 1 and p < 9:
            e(f"s_waitcnt vmcnt({7*(min(p+3,9)-(p+1))})")
            if not opt.get('a_nobar'):
                e("s_barrier")
        rds = reads(step + 1) if step < 19 and not opt.get('a_nords') else []
        dm = dma(p + 4) if (kk == 1 and p + 4 <= 9 and not opt.get('a_nodma')) else []
        if opt.get('a_steps'):
            e("s_memtime s[56:57]")
        per = opt.get('a_per', 3)
        for k, (d, a, b) in enumerate(ms[pre:]):
            mfma(e, d, a, b)
            for _ in range(per):
                if rds:
                    e(rds.pop(0))
            if not rds and dm:
                e("\n".join(dm.pop(0)))
        for g in dm:
            e("\n".join(g))
        lb = e.label("cs")
        e(f"s_cmp_lg_u32 s24, {step & 3}")
        e(f"s_cbranch_scc1 {lb}")
        for t in range(6):
            mfma(e, CS + 4 * t, AF + buf * 24 + 4 * t, ONES)
        e(f"{lb}:")
    stamp(e, 3)
    e(f"""s_nop 7
    v_lshlrev_b32 v{T}, 4, v3
    v_add_u32 v{T}, {CST}, v{T}
    v_cmp_eq_u32 vcc, 0, v2
    s_nop 1
    s_and_saveexec_b64 s[42:43], vcc""")
    for t in range(6):
        for r in range(4):
            e(f"ds_add_f32 v{T}, v{CS+4*t+r} offset:{64*t+4*r}")
    e("s_mov_b64 exec, -1")
    e(f"""v_and_b32 v{T+8}, 3, v2
    v_lshrrev_b32 v{T+9}, 2, v2""")
    for st in range(2):
        q = SUM + 2 + st
        e(f"v_mov_b32 v{SUM+st}, v{SS+4*st}")
        e(f"v_mov_b32 v{q}, v{SG+4*st}")
        for r in range(1, 4):
            e(f"""v_cmp_eq_u32 vcc, {r}, v{T+8}
            s_nop 1
            v_cndmask_b32 v{q}, v{q}, v{SG+4*st+r}, vcc""")
        e(f"""v_cmp_eq_u32 vcc, v{T+9}, v3
        s_nop 1
        v_cndmask_b32 v{q}, 0, v{q}, vcc""")
    for k in (2, 3):
        a, b = SUM + k, T + 8
        e(f"""v_mov_b32 v{b}, v{a}
        s_nop 1
        v_permlane16_swap_b32 v{a}, v{b}
        s_nop 1
        v_add_f32 v{a}, v{a}, v{b}
        v_mov_b32 v{b}, v{a}
        s_nop 1
        v_permlane32_swap_b32 v{a}, v{b}
        s_nop 1
        v_add_f32 v{a}, v{a}, v{b}""")
    NM, RI = T + 10, T + 14
    e("s_mov_b32 s44, 0x3acccccd")
    e("s_mov_b32 s45, 0x3727c5ac")
    for st in range(2):
        m, q = SUM + st, SUM + 2 + st
        e(f"""v_mul_f32 v{m}, s44, v{m}
        v_mul_f32 v{q}, s44, v{q}
        v_fma_f32 v{q}, -v{m}, v{m}, v{q}
        v_max_f32 v{q}, 0, v{q}
        v_cvt_pk_bf16_f32 v{m}, v{m}, v{m}
        v_cvt_pk_bf16_f32 v{q}, v{q}, v{q}
        v_lshlrev_b32 v{m}, 16, v{m}
        v_lshlrev_b32 v{q}, 16, v{q}
        v_add_f32 v{q}, s45, v{q}
        v_cvt_pk_bf16_f32 v{q}, v{q}, v{q}
        v_lshlrev_b32 v{q}, 16, v{q}
        v_sqrt_f32 v{q}, v{q}
        s_nop 0
        v_cvt_pk_bf16_f32 v{q}, v{q}, v{q}
        v_lshlrev_b32 v{q}, 16, v{q}
        v_rcp_f32 v{RI+2*st}, v{q}
        v_sub_f32 v{NM+2*st}, 0, v{m}""")
    e(f"""s_cmp_lg_u32 s26, 0
    s_cbranch_scc1 A_nostat
    v_add_u32 v{T+8}, s39, v2
    v_lshlrev_b32 v{T+8}, 3, v{T+8}
    v_add_u32 v{T+8}, {WS_ST}, v{T+8}
    v_cmp_gt_u32 vcc, 16, v1
    s_nop 1
    s_and_saveexec_b64 s[42:43], vcc""")
    for st in range(2):
        e(f"""v_mov_b32 v{T+18}, v{SUM+st}
        v_mov_b32 v{T+19}, v{RI+2*st}
        buffer_store_dwordx2 {vr(T+18,2)}, v{T+8}, s[16:19], 0 offen offset:{128*st}{SC(opt)}
        s_nop 1""")
    e("""s_mov_b64 exec, -1
    A_nostat:
    s_waitcnt lgkmcnt(0)""")
    if opt.get('a_lsync', 1):
        arrive(e, 12)
        await_all(e, 12, peeked=False)
    else:
        e("s_barrier")
    wl = []
    import kb
    if opt.get('fuse', 1) and opt.get('b_self', 0) and kb.nwl(opt):
        NW = kb.nwl(opt)
        kb.lds_wait(e, "A_wrdy", kb.S_WRDY, 1, 1)
        e(f"""s_and_b32 s50, s2, 1
        s_lshl_b32 s50, s50, 2
        s_bfe_u32 s51, s2, 0x20003
        s_add_u32 s50, s50, s51
        s_mul_i32 s50, s50, 48
        s_mul_i32 s51, s24, 12
        s_add_u32 s50, s50, s51
        s_mul_i32 s50, s50, 5120
        s_add_u32 s50, s50, {WS_W2 + 3 * 5120 - 1024}
        s_mul_i32 s51, s24, {NW * 5120}
        s_sub_u32 m0, s51, 1024
        v_lshlrev_b32 v252, 4, v1""")
        wl = ["""s_add_u32 m0, m0, 1024
        s_add_u32 s50, s50, 1024
        buffer_load_dwordx4 v252, s[16:19], s50 offen lds"""] * (NW * 5)
    stamp(e, 4)
    CSF, B1F = AF, AF + 24
    e(f"v_lshlrev_b32 v{T}, 4, v3")
    e(f"v_add_u32 v{T}, {CST}, v{T}")
    for t in range(6):
        e(f"ds_read_b128 {vr(CSF+4*t,4)}, v{T} offset:{64*t}")
    for t in range(6):
        for h in range(2):
            e(f"v_lshlrev_b32 v{B1F+4*t+2*h}, 16, v{B1+2*t+h}")
            e(f"v_and_b32 v{B1F+4*t+2*h+1}, 0xffff0000, v{B1+2*t+h}")
    C1, ONE = T + 20, T + 22
    e(f"""s_mov_b32 s46, 0xbdd2d3e8
    s_mov_b32 s47, 0xbdd2d3e8
    v_mov_b32 v{C1}, 0xc0135761
    v_mov_b32 v{C1+1}, 0xc0135761
    v_mov_b32 v{ONE}, 1.0
    v_mov_b32 v{ONE+1}, 1.0
    s_lshl_b32 s48, s25, 3
    s_lshl_b32 s49, s24, 1
    s_add_u32 s48, s48, s49
    s_mul_i32 s48, s48, 48
    s_mul_i32 s49, s26, 3
    s_add_u32 s48, s48, s49
    s_lshl_b32 s48, s48, 10
    s_add_u32 s49, s48, 49152
    v_lshlrev_b32 v{T+1}, 4, v1
    s_waitcnt lgkmcnt(0)""")
    X, Q, OUT = T + 24, T + 32, T + 40
    for st in range(2):
        for P in range(3):
            ob = OUT + 4 * ((st * 3 + P) & 3)
            for tt in range(2):
                t = 2 * P + tt
                a = ACC + (st * 6 + t) * 4
                prs = [(a + 2 * h, CSF + 4 * t + 2 * h, B1F + 4 * t + 2 * h, X + 2 * h + 4 * tt, Q + 2 * h + 4 * tt) for h in range(2)]
                if opt.get('a_nopk', 1):
                    el = [(aa + u, cs + u, b1 + u, x + u, q + u) for (aa, cs, b1, x, q) in prs for u in range(2)]
                    for tpl in ("v_fma_f32 v{x}, v{cs}, v{nm}, v{aa}", "v_fma_f32 v{x}, v{x}, v{ri}, v{b1}",
                                "v_mul_f32 v{q}, v{x}, v{x}", "v_fma_f32 v{q}, v{q}, s46, v{c1}",
                                "v_mul_f32 v{q}, v{q}, v{x}", "v_exp_f32 v{q}, v{q}", "v_add_f32 v{q}, 1.0, v{q}",
                                "v_rcp_f32 v{q}, v{q}", "v_mul_f32 v{x}, v{x}, v{q}"):
                        for (aa, cs, b1, x, q) in el:
                            e(tpl.format(aa=aa, cs=cs, b1=b1, x=x, q=q, nm=NM + 2 * st, ri=RI + 2 * st, c1=C1))
                else:
                    for (aa, cs, b1, x, q) in prs:
                        e(f"v_pk_fma_f32 {vr(x,2)}, {vr(cs,2)}, {vr(NM+2*st,2)}, {vr(aa,2)} op_sel_hi:[1,0,1]")
                    for (aa, cs, b1, x, q) in prs:
                        e(f"v_pk_fma_f32 {vr(x,2)}, {vr(x,2)}, {vr(RI+2*st,2)}, {vr(b1,2)} op_sel_hi:[1,0,1]")
                    for (aa, cs, b1, x, q) in prs:
                        e(f"v_pk_mul_f32 {vr(q,2)}, {vr(x,2)}, {vr(x,2)}")
                    for (aa, cs, b1, x, q) in prs:
                        e(f"v_pk_fma_f32 {vr(q,2)}, {vr(q,2)}, s[46:47], {vr(C1,2)}")
                    for (aa, cs, b1, x, q) in prs:
                        e(f"v_pk_mul_f32 {vr(q,2)}, {vr(q,2)}, {vr(x,2)}")
                    for (aa, cs, b1, x, q) in prs:
                        e(f"v_exp_f32 v{q}, v{q}")
                        e(f"v_exp_f32 v{q+1}, v{q+1}")
                    for (aa, cs, b1, x, q) in prs:
                        e(f"v_pk_add_f32 {vr(q,2)}, {vr(q,2)}, {vr(ONE,2)}")
                    for (aa, cs, b1, x, q) in prs:
                        e(f"v_rcp_f32 v{q}, v{q}")
                        e(f"v_rcp_f32 v{q+1}, v{q+1}")
                    for (aa, cs, b1, x, q) in prs:
                        e(f"v_pk_mul_f32 {vr(x,2)}, {vr(x,2)}, {vr(q,2)}")
                for h, (aa, cs, b1, x, q) in enumerate(prs):
                    e(f"v_cvt_pk_bf16_f32 v{ob+2*tt+h}, v{x}, v{x+1}")
                if tt == 0:
                    for _ in range(opt.get('b_wlper', 3)):
                        if wl:
                            e(wl.pop(0))
            e(f"buffer_store_dwordx4 {vr(ob,4)}, v{T+1}, s[16:19], s{48+st} offen offset:{1024*P}{SC(opt)}")
            for _ in range(5):
                if wl:
                    e(wl.pop(0))
    for g in wl:
        e(g)
    if opt.get('a_steps'):
        e(f"""s_lshl_b32 s58, s2, 2
        s_add_u32 s58, s58, s24
        s_lshl_b32 s58, s58, 8
        s_add_u32 s58, s58, {WS_Z}
        v_lshlrev_b32 v238, 2, v1
        buffer_store_dword v239, v238, s[16:19], s58 offen""")
    if opt.get('fuse', 1):
        endp(e, 0, False)
        import kb
        kb.gemm2(e, opt)
    else:
        endp(e, 0)


def prefetch_a(e, opt):
    e("s_load_dwordx2 s[40:41], s[0:1], %d" % KA['q'])
    e("s_load_dwordx2 s[42:43], s[0:1], %d" % KA['w1'])
    e("""s_and_b32 s44, s2, 7
    s_lshr_b32 s45, s2, 3
    s_sub_u32 s46, s24, 4
    s_mul_i32 s47, s46, 48
    v_add_u32 v4, s47, v1
    s_mov_b32 s48, 5462
    v_mul_lo_u32 v5, v4, s48
    v_lshrrev_b32 v5, 16, v5
    v_mul_u32_u24 v6, 12, v5
    v_sub_u32 v6, v4, v6
    s_lshr_b32 s47, s44, 1
    s_lshl_b32 s47, s47, 9
    s_lshl_b32 s49, s45, 4
    s_add_u32 s47, s47, s49
    v_add_u32 v5, s47, v5
    v_mul_u32_u24 v5, 1280, v5
    v_lshlrev_b32 v6, 6, v6
    v_add_u32 v5, v5, v6
    v_add_u32 v5, 512, v5
    v_bfrev_b32 v7, 1
    v_cmp_gt_u32 vcc, 48, v1
    s_nop 1
    v_cndmask_b32 v5, v7, v5, vcc
    s_mul_i32 s47, s46, 72
    s_mul_i32 s49, s45, 12
    s_add_u32 s49, s49, 256
    s_and_b32 s50, s44, 1
    s_mul_i32 s50, s50, 1536
    s_mov_b32 s48, 2731""")
    for h in range(2):
        e(f"""v_add_u32 v4, s47, v1
        v_add_u32 v4, {64*h}, v4
        v_mul_lo_u32 v8, v4, s48
        v_lshrrev_b32 v8, 16, v8
        v_mul_u32_u24 v6, 24, v8
        v_sub_u32 v6, v4, v6
        v_add_u32 v8, s49, v8
        v_mul_u32_u24 v8, 3072, v8
        v_lshlrev_b32 v6, 6, v6
        v_add_u32 v8, v8, v6
        v_add_u32 v{9+h}, s50, v8""")
    e("""v_cmp_gt_u32 vcc, 8, v1
    s_nop 1
    v_cndmask_b32 v10, v7, v10, vcc
    s_waitcnt lgkmcnt(0)""")
    srd(e, 52, 40, S * 1280)
    srd(e, 56, 42, D * 3072)
    e("""buffer_load_dword v252, v5, s[52:55], 0 offen
    buffer_load_dword v253, v9, s[56:59], 0 offen
    buffer_load_dword v254, v10, s[56:59], 0 offen""")


def conv(e, opt):
    ACC = 8
    FI, UI, AL = 40, 64, 80
    e("s_load_dwordx2 s[4:5], s[0:1], %d" % KA['ssm'])
    e("s_load_dwordx2 s[6:7], s[0:1], %d" % KA['Dv'])
    e("s_load_dwordx2 s[32:33], s[0:1], %d" % KA['dbg'])
    e("""s_and_b32 s25, s2, 7
    s_lshr_b32 s26, s2, 3
    s_sub_u32 s27, s24, 4
    s_cmp_eq_u32 s27, 3
    s_cbranch_scc1 A_cend
    s_mul_i32 s28, s25, 80
    s_add_u32 s28, s28, s27
    s_cmp_ge_u32 s26, 16
    s_cbranch_scc1 A_two
    s_mul_i32 s29, s26, 3
    s_branch A_chan
    A_two:
    s_cmp_eq_u32 s27, 2
    s_cbranch_scc1 A_cend
    s_lshl_b32 s29, s26, 1
    s_add_u32 s29, s29, 16
    A_chan:
    s_add_u32 s28, s28, s29""")
    e(f"""s_mul_i32 s30, s27, {CONV_LDS}
    s_add_u32 s30, s30, {PREP}
    s_lshl_b32 s36, s28, 12
    v_lshlrev_b32 v4, 4, v1
    s_waitcnt lgkmcnt(0)""")
    srd(e, 8, 4, D * 4096)
    srd(e, 12, 6, D * 2)
    srd(e, 20, 32, 256)
    UB = 2 * 4160
    e("s_mov_b32 s37, s36")
    for q in range(4):
        e(f"buffer_load_dwordx4 {vr(FI+6*q,4)}, v4, s[8:11], s37 offen")
        e(f"buffer_load_dword v{FI+6*q+4}, v4, s[8:11], s37 offen offset:16")
        e("s_add_u32 s37, s37, 1024")
    e(f"""v_and_b32 v205, 1, v3
    v_add_u32 v200, v2, v205
    v_subrev_u32 v200, 16, v200
    v_lshlrev_b32 v201, 1, v200
    v_add_u32 v201, s36, v201
    v_cmp_gt_i32 vcc, 0, v200
    v_bfrev_b32 v202, 1
    s_nop 0
    v_cndmask_b32 v201, v201, v202, vcc
    buffer_load_ushort v204, v201, s[8:11], 0 offen
    s_lshl_b32 s38, s28, 1
    v_mov_b32 v201, s38
    buffer_load_ushort v206, v201, s[12:15], 0 offen
    v_mul_u32_u24 v202, 4160, v205
    v_lshlrev_b32 v203, 1, v2
    v_add_u32 v202, v202, v203
    v_add_u32 v202, s30, v202""")
    def lds_wait(name, addr, val, all4, sleep):
        e(f"v_mov_b32 v{SYB}, {addr}")
        e(f"{name}:")
        if all4:
            e(f"""ds_read_b128 {vr(SY0,4)}, v{SYB}
            s_waitcnt lgkmcnt(0)
            v_min3_u32 v{SY0}, v{SY0}, v{SY0+1}, v{SY0+2}
            v_min_u32 v{SY0}, v{SY0}, v{SY0+3}""")
        else:
            e(f"""ds_read_b32 v{SY0}, v{SYB}
            s_waitcnt lgkmcnt(0)""")
        e(f"""v_cmp_gt_u32 vcc, {val}, v{SY0}
        s_nop 1
        s_cbranch_vccz {name}_ok
        s_sleep {sleep}
        s_branch {name}
        {name}_ok:""")
    e("""s_cmp_lg_u32 s27, 0
    s_cbranch_scc1 A_follow""")
    e(f"""v_mov_b32 v210, 0
    s_mov_b32 s40, 0
    A_seen:
    buffer_load_dword v212, v210, s[20:23], 0 offen sc1
    s_add_u32 s40, s40, 1
    s_waitcnt vmcnt(0)
    v_readfirstlane_b32 s38, v212
    s_cmp_eq_u32 s38, 1
    s_cbranch_scc1 A_seen_ok
    s_cmp_ge_u32 s40, 0x40000
    s_cbranch_scc1 A_seen_ok
    s_sleep 8
    s_branch A_seen
    A_seen_ok:""")
    if opt.get('c_gate', 0):
        lds_wait("A_stage", SYNC + 24, opt['c_gate'], False, 4)
    else:
        lds_wait("A_stage", SYNC, opt.get('c_stage', 9) + 1, True, 2)
    e(f"""s_cmp_ge_u32 s26, 16
    s_cselect_b32 s38, 1, 2
    s_add_u32 s38, s38, s28
    s_lshr_b32 s38, s38, 6
    s_lshl_b32 s38, s38, 4
    s_lshr_b32 s39, s28, 6
    s_lshl_b32 s39, s39, 4
    v_mov_b32 v210, s38
    v_mov_b32 v211, s39
    v_and_b32 v212, 16, v1
    v_cmp_eq_u32 vcc, 0, v212
    s_mov_b32 s40, 0
    v_cndmask_b32 v210, v210, v211, vcc
    v_add_u32 v210, v210, v2
    v_lshlrev_b32 v210, 7, v210
    v_add_u32 v210, {WS_FL}, v210
    A_poll:
    s_add_u32 s40, s40, 1
    s_cmp_ge_u32 s40, 0x40000
    s_cbranch_scc1 A_ready
    buffer_load_dword v212, v210, s[16:19], 0 offen sc1
    s_waitcnt vmcnt(0)
    v_cmp_ne_u32 vcc, 1, v212
    s_nop 1
    s_cbranch_vccz A_ready
    s_sleep {opt.get('c_sleep', 8)}
    s_branch A_poll
    A_ready:
    v_mov_b32 v210, {SYNC + 20}
    v_mov_b32 v211, 1
    s_mov_b64 exec, 1
    ds_write_b32 v210, v211
    s_mov_b64 exec, -1
    s_branch A_go
    A_follow:""")
    lds_wait("A_fw", SYNC + 20, 1, False, 2)
    e("A_go:")
    stamp(e, 3)
    e(f"s_add_u32 s37, s36, {WS_U}")
    for q in range(4):
        e(f"buffer_load_dwordx4 {vr(UI+4*q,4)}, v4, s[16:19], s37 offen sc1")
        e("s_add_u32 s37, s37, 1024")
    stamp(e, 4)
    e(f"s_setprio {opt.get('c_prio', 1)}")
    e(f"""v_add_u32 v207, s30, v4
    v_lshlrev_b32 v201, 3, v1
    v_add_u32 v201, s30, v201
    v_mov_b32 v208, 0
    v_mov_b32 v209, 0
    ds_write_b64 v201, v[208:209] offset:{UB}
    s_waitcnt vmcnt(4)
    ds_write_b16 v202, v204
    v_lshlrev_b32 v7, 16, v206""")
    for q in range(4):
        f = FI + 6 * q
        a = AL + 8 * (q & 1)
        e(f"ds_write_b128 v207, {vr(f,4)} offset:{32+1024*q}")
        for k in range(4):
            e(f"v_alignbyte_b32 v{a+k}, v{f+k+1}, v{f+k}, 2")
        e(f"ds_write_b128 v207, {vr(a,4)} offset:{4160+32+1024*q}")
    e("s_waitcnt vmcnt(0)")
    for q in range(4):
        e(f"ds_write_b128 v207, {vr(UI+4*q,4)} offset:{UB+512+1024*q}")
    e(f"""v_lshlrev_b32 v201, 3, v3
    v_sub_u32 v201, v2, v201
    v_add_u32 v201, 9, v201
    v_and_b32 v203, 1, v201
    v_sub_u32 v201, v201, v203
    v_add_u32 v201, 16, v201
    v_lshlrev_b32 v201, 1, v201
    v_mul_u32_u24 v203, 4160, v203
    v_add_u32 v201, v201, v203
    v_add_u32 v212, s30, v201
    v_add_u32 v213, 1024, v212
    v_add_u32 v214, 2048, v212
    v_add_u32 v215, 3072, v212
    v_lshlrev_b32 v201, 5, v2
    v_lshlrev_b32 v203, 4, v3
    v_add_u32 v201, v201, v203
    v_add_u32 v201, s30, v201
    v_add_u32 v6, {UB+480-448}, v201""")
    for r in range(32):
        e(f"v_mov_b32 v{ACC+r}, 0")
    e("s_waitcnt lgkmcnt(0)")

    def rd(j0):
        out = []
        for i in range(8):
            a = (40 if (j0 & 1) == 0 else 104) + 4 * i
            b = (72 if (j0 & 1) == 0 else 136) + 4 * i
            out.append(f"ds_read_b128 {vr(b,4)}, v6 offset:{448 + 64*(8*i - j0)}")
            o = 128 * (i & 1) + 16 * j0
            out.append(f"ds_read2_b32 {vr(a,2)}, v{212+(i>>1)} offset0:{o} offset1:{o+1}")
            out.append(f"ds_read2_b32 {vr(a+2,2)}, v{212+(i>>1)} offset0:{o+2} offset1:{o+3}")
        return out

    for r in rd(0):
        e(r)
    for j0 in range(8):
        a0 = 40 if (j0 & 1) == 0 else 104
        b0 = 72 if (j0 & 1) == 0 else 136
        fill = rd(j0 + 1) if j0 < 7 else []
        e("s_waitcnt lgkmcnt(0)")
        n = 0
        for i in range(8):
            for c in range(i, 8):
                mfma(e, ACC + 4 * c, a0 + 4 * i, b0 + 4 * (c - i))
                if fill and n < 24:
                    e(fill.pop(0))
                n += 1
    stamp(e, 5)
    UV = 40
    e(f"""v_lshrrev_b32 v201, 1, v3
    v_lshlrev_b32 v201, 4, v201
    v_and_b32 v203, 1, v3
    v_xor_b32 v203, 1, v203
    v_lshlrev_b32 v203, 3, v203
    v_add_u32 v201, v201, v203
    v_lshlrev_b32 v203, 5, v2
    v_add_u32 v201, v201, v203
    v_add_u32 v201, s30, v201
    v_lshlrev_b32 v202, 3, v3
    v_add_u32 v202, v202, v203
    s_add_u32 s37, s36, {WS_Z}""")
    for c in range(8):
        e(f"ds_read_b64 {vr(UV+2*c,2)}, v201 offset:{UB+512+512*c}")
    e("s_waitcnt lgkmcnt(0)")
    for c in range(8):
        a, u, t = ACC + 4 * c, UV + 2 * c, 60 + 8 * (c & 1)
        e(f"""v_cvt_pk_bf16_f32 v{t}, v{a}, v{a+1}
        v_cvt_pk_bf16_f32 v{t+1}, v{a+2}, v{a+3}
        v_lshlrev_b32 v{a}, 16, v{t}
        v_and_b32 v{a+1}, 0xffff0000, v{t}
        v_lshlrev_b32 v{a+2}, 16, v{t+1}
        v_and_b32 v{a+3}, 0xffff0000, v{t+1}
        v_and_b32 v{t+2}, 0xffff0000, v{u+1}
        v_lshlrev_b32 v{t+3}, 16, v{u+1}
        v_and_b32 v{t+4}, 0xffff0000, v{u}
        v_lshlrev_b32 v{t+5}, 16, v{u}
        v_fma_f32 v{a}, v{t+2}, v7, v{a}
        v_fma_f32 v{a+1}, v{t+3}, v7, v{a+1}
        v_fma_f32 v{a+2}, v{t+4}, v7, v{a+2}
        v_fma_f32 v{a+3}, v{t+5}, v7, v{a+3}
        v_cvt_pk_bf16_f32 v{80+2*c}, v{a}, v{a+1}
        v_cvt_pk_bf16_f32 v{81+2*c}, v{a+2}, v{a+3}
        buffer_store_dwordx2 {vr(80+2*c,2)}, v202, s[16:19], s37 offen offset:{512*c}{SC(opt)}""")
    if opt.get('fuse', 1):
        e(f"""s_waitcnt vmcnt(0)
        v_mov_b32 v9, {SYNC + 28}
        v_mov_b32 v10, 1
        v_mov_b32 v12, 0
        s_mov_b64 exec, 1
        ds_add_rtn_u32 v11, v9, v10
        s_cmp_ge_u32 s26, 16
        s_cselect_b32 s39, 1, 2
        s_waitcnt lgkmcnt(0)
        v_readfirstlane_b32 s38, v11
        s_cmp_lg_u32 s38, s39
        s_cbranch_scc1 A_nozflag
        s_lshl_b32 s38, s2, 7
        s_add_u32 s38, s38, {WS_FL + 8}
        buffer_store_dword v10, v12, s[16:19], s38 offen sc1
        A_nozflag:
        s_mov_b64 exec, -1""")
    endp(e, 0)
    e("A_cend:")
    if opt.get('fuse', 1):
        e("""s_cmp_eq_u32 s24, 7
        s_cbranch_scc1 B_aux""")
    endp(e, 0)


def prep(e, opt):
    e("""s_lshl_b32 s25, s2, 2
    s_add_u32 s25, s25, s24
    s_sub_u32 s25, s25, 4
    s_sub_u32 s26, s24, 4
    s_mul_i32 s26, s26, %d""" % CONV_LDS)
    e(f"s_add_u32 s26, s26, {PREP}")
    e("s_load_dwordx2 s[34:35], s[0:1], %d" % KA['ws'])
    if opt.get('a_early', 1):
        e("s_barrier")
    if opt.get('p_prio', 0):
        e(f"s_setprio {opt['p_prio']}")
    if opt.get('a_pf', 0):
        prefetch_a(e, opt)
    e("s_cmp_ge_u32 s25, 640")
    e("s_cbranch_scc1 A_w2prep")
    e("s_load_dwordx2 s[4:5], s[0:1], %d" % KA['k'])
    e("s_load_dwordx2 s[6:7], s[0:1], %d" % KA['v'])
    e("s_load_dwordx2 s[32:33], s[0:1], %d" % KA['shift'])
    e("""s_lshr_b32 s28, s2, 4
    s_and_b32 s27, s2, 15
    s_lshl_b32 s27, s27, 2
    s_add_u32 s27, s27, s24
    s_sub_u32 s27, s27, 4
    v_lshrrev_b32 v4, 3, v1
    v_and_b32 v5, 7, v1
    s_lshl_b32 s29, s27, 5
    v_lshlrev_b32 v6, 2, v4
    v_add_u32 v6, s29, v6
    v_mul_u32_u24 v6, 1280, v6
    s_lshl_b32 s30, s28, 7
    v_lshlrev_b32 v7, 4, v5
    v_add_u32 v7, s30, v7
    v_add_u32 v6, v6, v7
    v_lshlrev_b32 v8, 2, v7
    s_waitcnt lgkmcnt(0)""")
    srd(e, 8, 4, S * 1280)
    srd(e, 12, 6, S * 1280)
    srd(e, 20, 32, D * 8)
    srd(e, 16, 34, WS_END)
    K, V, W = 16, 44, 60
    for t in range(7):
        e(f"v_add_u32 v{9}, {(t-3)*1280 & 0xffffffff}, v6")
        e(f"buffer_load_dwordx4 {vr(K+4*t,4)}, v9, s[8:11], 0 offen")
    for t in range(4):
        e(f"buffer_load_dwordx4 {vr(V+4*t,4)}, v6, s[12:15], 0 offen offset:{1280*t}")
    for t in range(4):
        e(f"buffer_load_dwordx4 {vr(W+4*t,4)}, v8, s[20:23], 0 offen offset:{16*t}")
    e("s_load_dwordx2 s[6:7], s[0:1], %d" % KA['dbg'])
    e(f"""s_cmp_lg_u32 s25, 3
    s_cbranch_scc1 A_noclr
    v_lshlrev_b32 v9, 7, v1
    v_mov_b32 v10, 0
    v_mov_b32 v11, 0
    v_mov_b32 v12, 0
    v_mov_b32 v13, 0
    s_mov_b32 s38, {WS_FL}
    buffer_store_dwordx4 v[10:13], v9, s[16:19], s38 offen sc1
    s_add_u32 s38, s38, 8192
    buffer_store_dwordx4 v[10:13], v9, s[16:19], s38 offen sc1
    s_add_u32 s38, s38, 8192
    buffer_store_dwordx4 v[10:13], v9, s[16:19], s38 offen sc1
    s_add_u32 s38, s38, 8192
    buffer_store_dwordx4 v[10:13], v9, s[16:19], s38 offen sc1
    A_noclr:
    s_waitcnt lgkmcnt(0)""")
    srd(e, 40, 6, 256)
    if not opt.get('a_early', 1):
        e("s_barrier")
    if 'p_prio2' in opt:
        e(f"s_setprio {opt['p_prio2']}")
    stamp(e, 1)
    e("s_waitcnt vmcnt(0)")
    e(f"""s_cmp_lg_u32 s25, 3
    s_cbranch_scc1 A_noann
    v_mov_b32 v9, 0
    v_mov_b32 v10, 1
    s_mov_b64 exec, 1
    buffer_store_dword v10, v9, s[40:43], 0 offen sc1
    s_mov_b64 exec, -1
    A_noann:""")
    stamp(e, 2)
    KF, WF, VF, R, PK = 80, 136, 168, 200, 232
    for t in range(7):
        for r in range(4):
            e(f"v_lshlrev_b32 v{KF+8*t+2*r}, 16, v{K+4*t+r}")
            e(f"v_and_b32 v{KF+8*t+2*r+1}, 0xffff0000, v{K+4*t+r}")
    for r in range(16):
        e(f"v_lshlrev_b32 v{WF+2*r}, 16, v{W+r}")
        e(f"v_and_b32 v{WF+2*r+1}, 0xffff0000, v{W+r}")
    if not opt.get('a_lsync', 1):
        e("s_barrier")
    for r in range(16):
        e(f"v_lshlrev_b32 v{VF+2*r}, 16, v{V+r}")
        e(f"v_and_b32 v{VF+2*r+1}, 0xffff0000, v{V+r}")
    for i in range(4):
        for j in range(4):
            for c in range(8):
                k = KF + 8 * (i + 3 - j) + c
                wv = WF + 4 * c + j
                if j == 0:
                    e(f"v_mul_f32 v{R+8*i+c}, v{k}, v{wv}")
                else:
                    e(f"v_fma_f32 v{R+8*i+c}, v{k}, v{wv}, v{R+8*i+c}")
        for c in range(8):
            e(f"v_mul_f32 v{R+8*i+c}, v{R+8*i+c}, v{VF+8*i+c}")
        if i & 1 and not opt.get('a_lsync', 1):
            e("s_barrier")
    for c in range(8):
        e(f"v_cvt_pk_bf16_f32 v{PK+2*c}, v{R+24+c}, v{R+16+c}")
        e(f"v_cvt_pk_bf16_f32 v{PK+2*c+1}, v{R+8+c}, v{R+c}")
    e("""v_lshlrev_b32 v9, 5, v5
    v_lshrrev_b32 v10, 1, v4
    v_add_u32 v9, v9, v10
    v_and_b32 v10, 1, v4
    v_xor_b32 v10, 1, v10
    v_lshlrev_b32 v10, 3, v10
    v_add_u32 v10, s26, v10""")
    for c in range(8):
        e(f"""v_add_u32 v11, {4*c}, v9
        v_xor_b32 v11, v11, v5
        v_lshlrev_b32 v11, 4, v11
        v_add_u32 v11, v11, v10
        ds_write_b64 v11, {vr(PK+2*c,2)}""")
    e(f"""v_lshlrev_b32 v9, 4, v1
    v_add_u32 v9, s26, v9
    s_lshl_b32 s30, s28, 18
    s_lshl_b32 s31, s27, 6
    s_add_u32 s30, s30, s31
    s_add_u32 s30, s30, {WS_U}
    s_waitcnt lgkmcnt(0)""")
    for q in range(4):
        e(f"ds_read_b128 {vr(16+4*q,4)}, v9 offset:{1024*q}")
    for q in range(4):
        e(f"""v_lshrrev_b32 v10, 5, v1
        v_add_u32 v10, {2*q}, v10
        v_add_u32 v11, {64*q}, v1
        v_xor_b32 v11, v11, v10
        v_lshrrev_b32 v10, 2, v11
        v_and_b32 v11, 3, v11
        v_lshlrev_b32 v10, 12, v10
        v_lshlrev_b32 v11, 4, v11
        v_add_u32 v{40+q}, v10, v11""")
    for q in range(4):
        e(f"s_waitcnt lgkmcnt({3-q})")
        e(f"buffer_store_dwordx4 {vr(16+4*q,4)}, v{40+q}, s[16:19], s30 offen sc1")
    e(f"""s_mov_b32 s49, {WS_FL}
    A_post:
    v_mov_b32 v12, 0
    buffer_load_dword v13, v12, s[40:43], 0 offen sc1
    s_waitcnt vmcnt(0)
    v_mov_b32 v9, {SYNC + 16}
    v_mov_b32 v10, 1
    s_mov_b64 exec, 1
    ds_add_rtn_u32 v11, v9, v10
    s_waitcnt lgkmcnt(0)
    v_readfirstlane_b32 s38, v11
    s_cmp_lg_u32 s38, 3
    s_cbranch_scc1 A_noflag
    s_mov_b32 s39, 0
    A_clr:
    v_readfirstlane_b32 s38, v13
    s_cmp_eq_u32 s38, 1
    s_cbranch_scc1 A_flag
    s_add_u32 s39, s39, 1
    s_cmp_ge_u32 s39, 0x40000
    s_cbranch_scc1 A_flag
    s_sleep 8
    buffer_load_dword v13, v12, s[40:43], 0 offen sc1
    s_waitcnt vmcnt(0)
    s_branch A_clr
    A_flag:
    s_lshl_b32 s38, s2, 7
    s_add_u32 s38, s38, s49
    buffer_store_dword v10, v12, s[16:19], s38 offen sc1
    A_noflag:
    s_mov_b64 exec, -1
    s_branch A_conv""")
    e("A_w2prep:")
    e("s_load_dwordx2 s[4:5], s[0:1], %d" % KA['w2'])
    e("s_load_dwordx2 s[6:7], s[0:1], %d" % KA['dbg'])
    e("""s_sub_u32 s25, s25, 640
    s_mul_i32 s27, s25, 1366
    s_lshr_b32 s27, s27, 16
    s_mul_i32 s28, s27, 48
    s_sub_u32 s28, s25, s28
    s_mul_i32 s29, s28, 40960
    s_mul_i32 s30, s27, 160
    s_add_u32 s29, s29, s30
    s_mov_b32 s38, 6554
    s_waitcnt lgkmcnt(0)""")
    srd(e, 8, 4, F * 1280)
    srd(e, 16, 34, WS_END)
    srd(e, 40, 6, 256)
    for q in range(5):
        e(f"""v_add_u32 v4, {64*q}, v1
        v_mul_lo_u32 v5, v4, s38
        v_lshrrev_b32 v5, 16, v5
        v_mul_u32_u24 v6, 10, v5
        v_sub_u32 v6, v4, v6
        v_mul_u32_u24 v5, 1280, v5
        v_lshlrev_b32 v6, 4, v6
        v_add_u32 v5, v5, v6
        s_add_u32 m0, s26, {1024*q}
        s_nop 0
        buffer_load_dwordx4 v5, s[8:11], s29 offen lds""")
    if not opt.get('a_early', 1):
        e("s_barrier")
    e(f"""v_bfe_u32 v4, v1, 2, 2
    v_lshlrev_b32 v5, 2, v3
    v_add_u32 v4, v4, v5
    v_mul_u32_u24 v4, 160, v4
    v_and_b32 v5, 3, v1
    v_lshlrev_b32 v5, 3, v5
    v_add_u32 v4, v4, v5
    v_add_u32 v4, s26, v4
    s_mul_i32 s30, s25, 5120
    s_add_u32 s30, s30, {WS_W2}
    v_lshlrev_b32 v6, 4, v1
    v_add_u32 v7, 4096, v6
    s_waitcnt vmcnt(0)""")
    for t in range(5):
        for h in range(2):
            e(f"ds_read_b64_tr_b16 {vr(16+4*t+2*h,2)}, v4 offset:{32*t+2560*h}")
    e("s_waitcnt lgkmcnt(0)")
    for t in range(5):
        e(f"buffer_store_dwordx4 {vr(16+4*t,4)}, v{7 if t==4 else 6}, s[16:19], s30 offen offset:{0 if t==4 else 1024*t}{SC(opt)}")
    if opt.get('fuse', 1):
        e(f"""s_mov_b32 s49, {WS_FL + 12}
        s_branch A_post""")
    e("s_waitcnt vmcnt(0)")
    e("A_conv:")
    conv(e, opt)


def kernel_a(e, label, opt):
    e(f".globl {label}\n.p2align 8\n.type {label},@function\n{label}:")
    e("""s_cmp_ge_u32 s2, 256
    s_cbranch_scc1 A_exit
    v_lshrrev_b32 v1, 6, v0
    s_nop 0
    v_readfirstlane_b32 s24, v1
    v_and_b32 v1, 63, v0
    v_and_b32 v2, 15, v1
    v_lshrrev_b32 v3, 4, v1
    s_nop 1
    """)
    stamp(e, 0)
    e("""s_cmp_ge_u32 s24, 4
    s_cbranch_scc1 A_prep""")
    gemm1(e, opt)
    e("A_prep:")
    prep(e, opt)
    if opt.get('fuse', 1):
        import kb
        e("B_aux:")
        kb.aux(e, opt)
    e("A_exit:")
    e("s_endpgm")
```

```python
from common import *

XCH = 0
ZT = XCH + 12 * 5120
LDS_B = 90112


SYNC = 114688 + 384
S_GO, S_HCNT, S_HRDY, S_ZRDY, S_WRDY = SYNC + 20, SYNC + 24, SYNC + 32, SYNC + 36, SYNC + 40


def nwl(opt):
    return opt.get('b_wl', 5) if opt.get('fuse', 1) else 0


def zt(opt):
    return 102400 if nwl(opt) else ZT


def lds_wait4(e, name, val, sleep):
    e(f"""v_mov_b32 v249, {SYNC}
    {name}:
    ds_read_b128 v[244:247], v249
    s_waitcnt lgkmcnt(0)
    v_min3_u32 v244, v244, v245, v246
    v_min_u32 v244, v244, v247
    v_cmp_gt_u32 vcc, {val}, v244
    s_nop 1
    s_cbranch_vccz {name}_ok
    s_sleep {sleep}
    s_branch {name}
    {name}_ok:""")


def lds_wait(e, name, addr, val, sleep):
    e(f"""v_mov_b32 v249, {addr}
    {name}:
    ds_read_b32 v244, v249
    s_waitcnt lgkmcnt(0)
    v_cmp_gt_u32 vcc, {val}, v244
    s_nop 1
    s_cbranch_vccz {name}_ok
    s_sleep {sleep}
    s_branch {name}
    {name}_ok:""")


def lds_set(e, addr, val):
    e(f"""v_mov_b32 v248, {addr}
    v_mov_b32 v250, {val}
    s_mov_b64 exec, 1
    ds_write_b32 v248, v250
    s_mov_b64 exec, -1""")


def poll(e, name, vaddr, sleep):
    e(f"""s_mov_b32 s40, 0
    {name}:
    s_add_u32 s40, s40, 1
    s_cmp_ge_u32 s40, 0x40000
    s_cbranch_scc1 {name}_ok
    buffer_load_dword v245, v{vaddr}, s[16:19], 0 offen sc1
    s_waitcnt vmcnt(0)
    v_cmp_ne_u32 vcc, 1, v245
    s_nop 1
    s_cbranch_vccz {name}_ok
    s_sleep {sleep}
    s_branch {name}
    {name}_ok:""")


def gemm2(e, opt):
    ACC, PIPE, T = 8, 88, 232
    fuse = opt.get('fuse', 1)
    if fuse:
        stamp(e, 0)
        e(f"s_setprio {opt.get('b_prio', 0)}")
    e("s_load_dwordx2 s[34:35], s[0:1], %d" % KA['ws'])
    e("s_load_dwordx2 s[4:5], s[0:1], %d" % KA['q'])
    e("s_load_dwordx2 s[6:7], s[0:1], %d" % KA['b2'])
    e("s_load_dwordx2 s[32:33], s[0:1], %d" % KA['out'])
    e("""s_and_b32 s27, s2, 7
    s_lshr_b32 s28, s2, 3
    s_and_b32 s25, s27, 1
    s_lshl_b32 s25, s25, 2
    s_and_b32 s29, s28, 3
    s_add_u32 s25, s25, s29
    s_lshr_b32 s26, s27, 1
    s_lshl_b32 s26, s26, 3
    s_lshr_b32 s29, s28, 2
    s_add_u32 s26, s26, s29
    s_mul_i32 s36, s24, 12""")
    for sl in range(4):
        e(f"""s_add_u32 s29, s24, {sl}
        s_and_b32 s29, s29, 3
        s_lshl_b32 s30, s26, 2
        s_add_u32 s29, s29, s30
        s_mul_i32 s29, s29, 48
        s_add_u32 s29, s29, s36
        s_lshl_b32 s{40+sl}, s29, 10""")
    rot = opt.get('b_rot', 0)
    if rot:
        e(f"""s_and_b32 s45, s28, 3
        s_mul_i32 s45, s45, {rot}
        s_lshr_b32 s46, s28, 2
        s_mul_i32 s46, s46, {opt.get('b_rot2', 1)}
        s_add_u32 s45, s45, s46
        s_cmp_ge_u32 s45, 12
        s_cselect_b32 s46, 12, 0
        s_sub_u32 s45, s45, s46
        s_cmp_ge_u32 s45, 12
        s_cselect_b32 s46, 12, 0
        s_sub_u32 s45, s45, s46
        s_lshl_b32 s46, s45, 10
        s_add_u32 s40, s40, s46
        s_add_u32 s41, s41, s46
        s_add_u32 s42, s42, s46
        s_add_u32 s43, s43, s46
        s_add_u32 s36, s36, s45
        s_mov_b32 s47, {(1024 - 12288) & 0xffffffff}
        s_mov_b32 s48, 1024
        s_mov_b32 s50, {(5120 - 61440) & 0xffffffff}
        s_mov_b32 s51, 5120""")
    e(f"""s_mul_i32 s29, s25, 48
    s_add_u32 s29, s29, s36
    s_mul_i32 s44, s29, 5120
    s_add_u32 s44, s44, {WS_W2}
    v_lshlrev_b32 v4, 4, v1
    v_add_u32 v5, 4096, v4
    s_waitcnt lgkmcnt(0)""")
    srd(e, 16, 34, WS_END)
    srd(e, 8, 4, S * 1280)
    srd(e, 12, 6, D * 2)
    srd(e, 20, 32, S * 1280)

    NW = nwl(opt)
    def staged(k):
        return 3 <= k < 3 + NW
    def nvm(k):
        return 0 if k > 11 else (4 if staged(k) else 9)
    def loads(k):
        b = PIPE + (k & 3) * 36
        out = []
        if staged(k):
            for sl in range(4):
                out.append([f"buffer_load_dwordx4 {vr(b+4*sl,4)}, v4, s[16:19], s{40+sl} offen",
                            f"s_add_u32 s{40+sl}, s{40+sl}, 1024"])
            for t in range(5):
                out.append([f"ds_read_b128 {vr(b+16+4*t,4)}, v6 offset:{(k-3)*5120+1024*t}"])
            out[-1].append("s_add_u32 s44, s44, 5120")
            return out
        for t in range(5):
            out.append([f"buffer_load_dwordx4 {vr(b+16+4*t,4)}, v{5 if t==4 else 4}, s[16:19], s44 offen offset:{0 if t==4 else 1024*t}"])
        out[-1].append("s_add_u32 s44, s44, " + ("s49" if rot else "5120"))
        if rot:
            out[0] = ["s_add_u32 s45, s45, 1", "s_cmp_eq_u32 s45, 12", "s_cselect_b32 s46, s47, s48",
                      "s_cselect_b32 s49, s50, s51"] + out[0]
        for sl in range(4):
            out.append([f"buffer_load_dwordx4 {vr(b+4*sl,4)}, v4, s[16:19], s{40+sl} offen",
                        f"s_add_u32 s{40+sl}, s{40+sl}, " + ("s46" if rot else "1024")])
        return out

    if fuse:
        e(f"""s_waitcnt vmcnt(0)
        v_mov_b32 v248, {S_HCNT}
        v_mov_b32 v250, 1
        s_mov_b64 exec, 1
        ds_add_rtn_u32 v244, v248, v250
        s_waitcnt lgkmcnt(0)
        v_readfirstlane_b32 s38, v244
        s_cmp_lg_u32 s38, 3
        s_cbranch_scc1 B_nohflag""")
        if not (NW and opt.get('b_self', 0)):
            lds_wait(e, "B_hgo", S_GO, 1, 2)
        e(f"""v_mov_b32 v246, 0
        s_lshl_b32 s38, s2, 7
        s_add_u32 s38, s38, {WS_FL + 4}
        buffer_store_dword v250, v246, s[16:19], s38 offen sc1
        B_nohflag:
        s_mov_b64 exec, -1""")
        lds_wait(e, "B_wrdy", S_WRDY, 1, 2)
        pro = [loads(k) for k in range(3)]
        for g in pro:
            for x in g[:5]:
                e("\n".join(x))
        for r in range(80):
            e(f"v_mov_b32 v{ACC+r}, 0")
        stamp(e, 1)
        lds_wait(e, "B_hrdy", S_HRDY, 1, opt.get('b_hsleep', 1))
        stamp(e, 2)
        for g in pro:
            for x in g[5:]:
                e("\n".join(x))
        e(f"""s_mul_i32 s29, s24, {NW * 5120}
        v_add_u32 v6, s29, v4
        s_lshl_b32 s29, s24, 2
        s_add_u32 s29, s29, {SYNC}
        v_mov_b32 v248, s29""")
    else:
        for k in range(3):
            for g in loads(k):
                e("\n".join(g))
        for r in range(80):
            e(f"v_mov_b32 v{ACC+r}, 0")
        stamp(e, 1)
    XV, B2, STV, PB = 88, 98, 108, 112
    def operands():
        e(f"""s_lshl_b32 s45, s26, 6
        s_lshl_b32 s46, s24, 4
        s_add_u32 s45, s45, s46
        v_add_u32 v6, s45, v2
        v_lshlrev_b32 v7, 3, v6
        v_add_u32 v7, {WS_ST}, v7
        v_mul_u32_u24 v6, 1280, v6
        s_mul_i32 s47, s25, 160
        v_lshlrev_b32 v{T}, 3, v3
        v_add_u32 v{T}, s47, v{T}
        v_add_u32 v6, v6, v{T}""")
        for t in range(5):
            e(f"buffer_load_dwordx2 {vr(XV+2*t,2)}, v6, s[8:11], 0 offen offset:{32*t}")
        for t in range(5):
            e(f"buffer_load_dwordx2 {vr(B2+2*t,2)}, v{T}, s[12:15], 0 offen offset:{32*t}")
        e(f"buffer_load_dwordx2 {vr(STV,2)}, v7, s[16:19], 0 offen")
    EARLY = fuse and opt.get('b_early', 1)
    for k in range(12):
        b = PIPE + (k & 3) * 36
        fill = loads(k + 3) if k + 3 < 12 else []
        if fuse:
            nv = [8, 4 + nvm(3)][k] if k < 2 else nvm(k + 1) + nvm(k + 2)
            if EARLY and k >= 10:
                nv += 11
            e(f"s_waitcnt vmcnt({nv})" + (" lgkmcnt(0)" if NW and 1 <= k <= NW + 2 else ""))
            if NW and k == NW:
                e("""v_mov_b32 v250, 13
                s_mov_b64 exec, 1
                ds_write_b32 v248, v250
                s_mov_b64 exec, -1""")
        else:
            e(f"s_waitcnt vmcnt({9*min(2, 11-k)})")
        n = 0
        for t in range(5):
            for sl in range(4):
                mfma(e, ACC + (sl * 5 + t) * 4, b + 16 + 4 * t, b + 4 * sl)
                if EARLY and k == 9 and n == 3:
                    operands()
                if n & 1 and fill:
                    e("\n".join(fill.pop(0)))
                n += 1
        for g in fill:
            e("\n".join(g))
    stamp(e, 3)
    if not EARLY:
        operands()
    e("s_nop 4")
    if NW:
        lds_wait4(e, "B_xfree", 13, 1)
    for sl in range(1, 4):
        e(f"""s_add_u32 s29, s24, {sl}
        s_and_b32 s29, s29, 3
        s_mul_i32 s29, s29, 15360
        s_add_u32 s29, s29, {XCH + (sl-1)*5120}
        v_add_u32 v{T+1}, s29, v4""")
        for t in range(5):
            e(f"ds_write_b128 v{T+1}, {vr(ACC+(sl*5+t)*4,4)} offset:{1024*t}")
    e(f"""s_mul_i32 s29, s24, 15360
    s_add_u32 s29, s29, {XCH}
    v_add_u32 v{T+1}, s29, v4
    v_bfe_u32 v{T+2}, v1, 2, 2
    v_lshlrev_b32 v{T+3}, 2, v3
    v_add_u32 v{T+2}, v{T+2}, v{T+3}
    v_lshlrev_b32 v{T+2}, 7, v{T+2}
    v_and_b32 v{T+3}, 3, v1
    v_lshlrev_b32 v{T+3}, 3, v{T+3}
    v_add_u32 v{T+2}, v{T+2}, v{T+3}
    s_lshl_b32 s29, s24, 5
    s_add_u32 s29, s29, {zt(opt)}
    v_add_u32 v{T+2}, s29, v{T+2}
    s_waitcnt lgkmcnt(0)""")
    stamp(e, 4)
    if fuse:
        e(f"""s_lshl_b32 s29, s24, 2
        s_add_u32 s29, s29, {SYNC}
        v_mov_b32 v248, s29
        v_mov_b32 v250, 14
        v_mov_b32 v249, {SYNC}
        s_mov_b64 exec, 1
        ds_write_b32 v248, v250
        s_mov_b64 exec, -1
        B_xw:
        ds_read_b128 v[244:247], v249
        ds_read_b32 v251, v249 offset:{S_ZRDY - SYNC}
        s_waitcnt lgkmcnt(0)
        v_min3_u32 v244, v244, v245, v246
        v_min3_u32 v244, v244, v247, v251
        v_cmp_gt_u32 vcc, 14, v244
        s_nop 1
        s_cbranch_vccnz B_xw""")
    else:
        e("s_barrier")
    stamp(e, 5)
    for j in range(3):
        for t in range(5):
            e(f"ds_read_b128 {vr(PB+(j*5+t)*4,4)}, v{T+1} offset:{j*5120+1024*t}")
        if j == 1:
            e("s_waitcnt lgkmcnt(5)")
            for r in range(20):
                e(f"v_add_f32 v{ACC+r}, v{ACC+r}, v{PB+r}")
    ZV = PB + 60
    for t in range(5):
        e(f"ds_read_b64_tr_b16 {vr(ZV+2*t,2)}, v{T+2} offset:{2048*t}")
    e("s_waitcnt lgkmcnt(10)")
    for r in range(20):
        e(f"v_add_f32 v{ACC+r}, v{ACC+r}, v{PB+20+r}")
    e("s_waitcnt lgkmcnt(5)")
    for r in range(20):
        e(f"v_add_f32 v{ACC+r}, v{ACC+r}, v{PB+40+r}")
    e("s_waitcnt vmcnt(0) lgkmcnt(0)")
    A, Bq, Cq, OUT = PB, PB + 4, PB + 8, PB + 16
    for t in range(5):
        for h in range(2):
            e(f"""v_lshlrev_b32 v{A+2*h}, 16, v{XV+2*t+h}
            v_and_b32 v{A+2*h+1}, 0xffff0000, v{XV+2*t+h}
            v_lshlrev_b32 v{Bq+2*h}, 16, v{ZV+2*t+h}
            v_and_b32 v{Bq+2*h+1}, 0xffff0000, v{ZV+2*t+h}
            v_lshlrev_b32 v{Cq+2*h}, 16, v{B2+2*t+h}
            v_and_b32 v{Cq+2*h+1}, 0xffff0000, v{B2+2*t+h}""")
        for r in range(4):
            a = ACC + 4 * t + r
            e(f"""v_add_f32 v{a}, v{a}, v{Cq+r}
            v_add_f32 v{a}, v{a}, v{A+r}
            v_sub_f32 v{A+r}, v{A+r}, v{STV}
            v_mul_f32 v{A+r}, v{A+r}, v{STV+1}""")
        for h in range(2):
            e(f"v_cvt_pk_bf16_f32 v{A+2*h}, v{A+2*h}, v{A+2*h+1}")
        for h in range(2):
            e(f"""v_and_b32 v{A+2*h+1}, 0xffff0000, v{A+2*h}
            v_lshlrev_b32 v{A+2*h}, 16, v{A+2*h}""")
        for r in range(4):
            a = ACC + 4 * t + r
            e(f"v_fma_f32 v{a}, v{A+r}, v{Bq+r}, v{a}")
        for h in range(2):
            a = ACC + 4 * t + 2 * h
            e(f"v_cvt_pk_bf16_f32 v{OUT+2*t+h}, v{a}, v{a+1}")
        e(f"buffer_store_dwordx2 {vr(OUT+2*t,2)}, v6, s[20:23], 0 offen offset:{32*t}")
    endp(e, 1)


def aux(e, opt):
    fuse = opt.get('fuse', 1)
    if fuse:
        stamp(e, 0)
        e("s_setprio 3")
    e("s_load_dwordx2 s[34:35], s[0:1], %d" % KA['ws'])
    e("""s_and_b32 s27, s2, 7
    s_lshr_b32 s28, s2, 3
    s_and_b32 s25, s27, 1
    s_lshl_b32 s25, s25, 2
    s_and_b32 s29, s28, 3
    s_add_u32 s25, s25, s29
    s_lshr_b32 s26, s27, 1
    s_lshl_b32 s26, s26, 3
    s_lshr_b32 s29, s28, 2
    s_add_u32 s26, s26, s29
    s_waitcnt lgkmcnt(0)""")
    srd(e, 16, 34, WS_END)
    e(f"""v_lshrrev_b32 v6, 3, v1
    v_lshlrev_b32 v6, 12, v6
    v_and_b32 v7, 7, v1
    v_lshlrev_b32 v7, 4, v7
    v_add_u32 v6, v6, v7
    s_mul_i32 s30, s25, {80*4096}
    s_lshl_b32 s31, s26, 7
    s_add_u32 s30, s30, s31
    s_add_u32 s30, s30, {WS_Z}""")
    if fuse:
        if opt.get('b_self', 0):
            e("s_load_dwordx2 s[32:33], s[0:1], %d" % KA['dbg'])
            e("s_waitcnt lgkmcnt(0)")
            srd(e, 20, 32, 256)
            e("""v_mov_b32 v8, 0
            s_mov_b32 s40, 0
            B_clr:
            buffer_load_dword v245, v8, s[20:23], 0 offen sc1
            s_add_u32 s40, s40, 1
            s_waitcnt vmcnt(0)
            v_readfirstlane_b32 s38, v245
            s_cmp_eq_u32 s38, 1
            s_cbranch_scc1 B_clr_ok
            s_cmp_ge_u32 s40, 0x40000
            s_cbranch_scc1 B_clr_ok
            s_sleep 8
            s_branch B_clr
            B_clr_ok:""")
        else:
            lds_wait(e, "B_ago", S_GO, 1, 8)
        e(f"""s_mul_i32 s29, s25, 12
        s_add_u32 s29, s29, 160
        v_min_u32 v8, 11, v1
        v_add_u32 v8, s29, v8
        v_lshlrev_b32 v8, 7, v8
        v_add_u32 v8, {WS_FL + 12}, v8
        s_lshr_b32 s28, s26, 1
        s_lshr_b32 s29, s28, 2
        s_lshl_b32 s29, s29, 1
        s_and_b32 s28, s28, 3
        v_bfe_u32 v9, v1, 3, 1
        v_add_u32 v9, s29, v9
        v_and_b32 v10, 7, v1
        v_lshlrev_b32 v10, 2, v10
        v_add_u32 v10, s28, v10
        v_lshlrev_b32 v10, 3, v10
        v_add_u32 v9, v9, v10
        v_lshlrev_b32 v9, 7, v9
        v_add_u32 v9, {WS_FL + 4}, v9
        v_and_b32 v10, 31, v1
        v_lshlrev_b32 v10, 3, v10
        v_add_u32 v10, s25, v10
        v_lshlrev_b32 v10, 7, v10
        v_add_u32 v10, {WS_FL + 8}, v10""")
        poll(e, "B_pw", 8, 8)
        lds_set(e, S_WRDY, 1)
        if opt.get('b_pfw', 0):
            e(f"""s_lshr_b32 s28, s2, 5
            s_mul_i32 s28, s28, 30720
            s_mul_i32 s29, s25, 245760
            s_add_u32 s28, s28, s29
            s_add_u32 s28, s28, {WS_W2}
            v_lshlrev_b32 v11, 7, v1""")
            for q in range(4):
                e(f"""buffer_load_dword v{12+q}, v11, s[16:19], s28 offen
                s_add_u32 s28, s28, 8192""")
        NW = nwl(opt)
        if NW and not opt.get('b_self', 0):
            lds_wait4(e, "B_ring", 12, 2)
            e(f"""s_mul_i32 s28, s25, 245760
            s_add_u32 s28, s28, {WS_W2 + 3 * 5120}
            v_lshlrev_b32 v11, 4, v1""")
            for w in range(4):
                e(f"""s_add_u32 s29, s28, {w * 12 * 5120}
                s_mov_b32 m0, {w * NW * 5120}
                s_mov_b32 s38, 0
                B_wl{w}:
                buffer_load_dwordx4 v11, s[16:19], s29 offen lds
                s_add_u32 s29, s29, 1024
                s_add_u32 m0, m0, 1024
                s_add_u32 s38, s38, 1
                s_waitcnt vmcnt(40)
                s_cmp_lt_u32 s38, {NW * 5}
                s_cbranch_scc1 B_wl{w}""")
            e("s_waitcnt vmcnt(0)")
        lds_wait(e, "B_own", S_HCNT, 4, 2)
        poll(e, "B_ph", 9, opt.get('b_psleep', 1))
        lds_set(e, S_HRDY, 1)
        stamp(e, 1)
        poll(e, "B_pz", 10, opt.get('b_psleep', 1))
        stamp(e, 2)
    for q in range(10):
        e(f"""s_mov_b32 m0, {zt(opt)+1024*q}
        s_nop 0
        buffer_load_dwordx4 v6, s[16:19], s30 offen lds
        s_add_u32 s30, s30, {8*4096}""")
    e("s_waitcnt vmcnt(0)")
    stamp(e, 4)
    if fuse:
        lds_set(e, S_ZRDY, 14)
    else:
        e("s_barrier")
    endp(e, 1)


def kernel_b(e, label, opt):
    e(f".globl {label}\n.p2align 8\n.type {label},@function\n{label}:")
    e(f"""s_cmp_ge_u32 s2, 256
    s_cbranch_scc1 B_exit
    v_lshrrev_b32 v1, 6, v0
    s_nop 0
    v_readfirstlane_b32 s24, v1
    v_and_b32 v1, 63, v0
    v_and_b32 v2, 15, v1
    v_lshrrev_b32 v3, 4, v1
    s_nop 1""")
    stamp(e, 0)
    e("""s_cmp_eq_u32 s24, 4
    s_cbranch_scc1 B_aux""")
    gemm2(e, opt)
    e("B_aux:")
    aux(e, opt)
    e("B_exit:")
    e("s_endpgm")
```

```python
from common import *
CONV_LDS = 12928

ACC, CS, AF, BF = 16, 64, 88, 136
SUM, ONES, VW, VXD, VX0, VX1, VE, VO, B1 = 152, 156, 160, 163, 164, 165, 166, 167, 168
T = 180
SS, SG = 236, 244
XR = 49152
CST = 114688
PREP = 115200
LDS_A = PREP + 3 * CONV_LDS + 5120
SYNC = CST + 384
SY0, SYS, SYB, SYV = 228, 232, 233, 234


def SC(opt):
    return " sc1" if opt.get('fuse', 1) else ""


def arrive(e, val):
    e(f"""v_mov_b32 v{SYV}, {val}
    s_mov_b64 exec, 1
    ds_write_b32 v{SYS}, v{SYV}
    s_mov_b64 exec, -1""")


def peek(e):
    e(f"ds_read_b128 {vr(SY0,4)}, v{SYB}")


def await_all(e, val, peeked=True):
    again, done = e.label("sy"), e.label("sd")
    if not peeked:
        e(f"{again}:")
        peek(e)
    body = f"""s_waitcnt lgkmcnt(0)
    v_min3_u32 v{SY0}, v{SY0}, v{SY0+1}, v{SY0+2}
    v_min_u32 v{SY0}, v{SY0}, v{SY0+3}
    v_cmp_gt_u32 vcc, {val}, v{SY0}
    s_nop 1"""
    e(body)
    if not peeked:
        e(f"s_cbranch_vccnz {again}")
        return
    e(f"s_cbranch_vccz {done}")
    e(f"{again}:")
    peek(e)
    e(body)
    e(f"s_cbranch_vccnz {again}")
    e(f"{done}:")


def gemm1(e, opt):
    e(f"s_setprio {opt.get('a_prio', 2)}")
    EA = opt.get('a_early', 1)
    def kernargs():
        e("s_load_dwordx2 s[4:5], s[0:1], %d" % KA['q'])
        e("s_load_dwordx2 s[6:7], s[0:1], %d" % KA['w1'])
        e("s_load_dwordx2 s[32:33], s[0:1], %d" % KA['b1'])
        e("s_load_dwordx2 s[34:35], s[0:1], %d" % KA['ws'])
    if EA == 2:
        kernargs()
    if EA:
        e(f"""v_lshlrev_b32 v{T}, 4, v1
        v_add_u32 v{T}, {CST}, v{T}
        v_mov_b32 v{T+4}, 0
        v_mov_b32 v{T+5}, 0
        v_mov_b32 v{T+6}, 0
        v_mov_b32 v{T+7}, 0
        v_cmp_gt_u32 vcc, 32, v0
        s_nop 1
        s_and_saveexec_b64 s[42:43], vcc
        s_cbranch_execz A_nozero0
        ds_write_b128 v{T}, {vr(T+4,4)}
        A_nozero0:
        s_mov_b64 exec, -1""")
    if EA == 1:
        e("""s_waitcnt lgkmcnt(0)
        s_barrier""")
    if EA != 2:
        kernargs()
    e("""s_and_b32 s27, s2, 7
    s_lshr_b32 s28, s2, 3
    s_lshr_b32 s25, s27, 1
    s_lshl_b32 s25, s25, 2
    s_and_b32 s29, s28, 3
    s_add_u32 s25, s25, s29
    s_and_b32 s26, s27, 1
    s_lshl_b32 s26, s26, 3
    s_lshr_b32 s29, s28, 2
    s_add_u32 s26, s26, s29
    s_mul_i32 s30, s24, 3072
    s_lshl_b32 s31, s24, 12""")
    e("s_mul_i32 s36, s24, 192")
    e("s_mul_i32 s37, s26, 192")
    e("s_mov_b32 s38, 43691")
    for ii in range(3):
        e(f"""v_add_u32 v{T}, s36, v1
        v_add_u32 v{T}, {64*ii}, v{T}
        v_mul_lo_u32 v{T+1}, v{T}, s38
        v_lshrrev_b32 v{T+1}, 19, v{T+1}
        v_mul_u32_u24 v{T+2}, 12, v{T+1}
        v_sub_u32 v{T+2}, v{T}, v{T+2}
        v_lshrrev_b32 v{T+3}, 2, v{T+1}
        v_and_b32 v{T+3}, 2, v{T+3}
        v_xor_b32 v{T+2}, v{T+2}, v{T+3}
        v_lshlrev_b32 v{T+2}, 4, v{T+2}
        v_mul_u32_u24 v{T+1}, 3072, v{T+1}
        v_add_u32 v{T+1}, v{T+1}, v{T+2}
        v_add_u32 v{VW+ii}, s37, v{T+1}""")
    e(f"""s_lshl_b32 s39, s25, 7
    s_lshl_b32 s40, s24, 5
    s_add_u32 s39, s39, s40
    v_lshrrev_b32 v{T}, 3, v1
    v_and_b32 v{T+1}, 7, v1
    v_xor_b32 v{T+1}, v{T+1}, v{T}
    v_lshlrev_b32 v{T+1}, 4, v{T+1}
    v_add_u32 v{T}, s39, v{T}
    v_mul_u32_u24 v{T}, 1280, v{T}
    v_add_u32 v{VXD}, v{T}, v{T+1}""")
    e(f"""v_and_b32 v{T}, 7, v2
    v_xor_b32 v{T}, v{T}, v3
    v_lshlrev_b32 v{T}, 4, v{T}
    v_lshlrev_b32 v{T+1}, 7, v2
    v_add_u32 v{T}, v{T}, v{T+1}
    v_add_u32 v{T}, s31, v{T}
    v_add_u32 v{VX0}, {XR}, v{T}
    v_xor_b32 v{VX1}, 64, v{VX0}
    v_bfe_u32 v{T}, v1, 2, 2
    v_lshlrev_b32 v{T+1}, 3, v3
    v_add_u32 v{T}, v{T}, v{T+1}
    v_mul_u32_u24 v{T}, 192, v{T}
    v_and_b32 v{T+1}, 3, v1
    v_lshlrev_b32 v{T+1}, 3, v{T+1}
    v_add_u32 v{T}, v{T}, v{T+1}
    v_and_b32 v{T+1}, 1, v3
    v_lshlrev_b32 v{T+1}, 5, v{T+1}
    v_add_u32 v{VE}, v{T}, v{T+1}
    v_sub_u32 v{VO}, v{T}, v{T+1}""")
    e("s_waitcnt lgkmcnt(0)")
    srd(e, 8, 4, S * 1280)
    srd(e, 12, 6, D * 3072)
    srd(e, 16, 34, WS_END)
    srd(e, 20, 32, F * 2)
    e(f"""v_lshlrev_b32 v{T}, 3, v3
    v_add_u32 v{T}, s37, v{T}""")
    for t in range(6):
        e(f"buffer_load_dwordx2 {vr(B1+2*t,2)}, v{T}, s[20:23], 0 offen offset:{32*t}")

    def dma(p):
        out = []
        sg = p & 3
        for ii in range(3):
            out.append([f"s_add_u32 m0, s30, {sg*12288+ii*1024}", f"s_mov_b32 s41, {196608*p}",
                        f"buffer_load_dwordx4 v{VW+ii}, s[12:15], s41 offen lds"])
        for q in range(4):
            out.append([f"s_add_u32 m0, s31, {XR+sg*16384+q*1024}", f"s_mov_b32 s41, {10240*q+128*p}",
                        f"buffer_load_dwordx4 v{VXD}, s[8:11], s41 offen lds"])
        return out

    def reads(step):
        p, kk = step >> 1, step & 1
        sg, buf = p & 3, step & 1
        out = []
        for st in range(2):
            out.append(f"ds_read_b128 {vr(BF+buf*8+st*4,4)}, v{VX1 if kk else VX0} offset:{sg*16384+st*2048}")
        for t in range(6):
            for h in range(2):
                out.append(f"ds_read_b64_tr_b16 {vr(AF+buf*24+t*4+h*2,2)}, v{VO if t&1 else VE} "
                           f"offset:{sg*12288+192*(32*kk+4*h)+32*t}")
        return out

    for p in range(4):
        for g in dma(p):
            e("\n".join(g))
    for r in range(ACC, ACC + 72):
        e(f"v_mov_b32 v{r}, 0")
    for r in range(16):
        e(f"v_mov_b32 v{SS+r}, 0")
    for r in range(4):
        e(f"v_mov_b32 v{ONES+r}, 0x3f803f80")
    e(f"""v_mov_b32 v{SYB}, {SYNC}
    s_lshl_b32 s42, s24, 2
    v_add_u32 v{SYS}, s42, v{SYB}""")
    if EA:
        if EA == 2:
            e("s_barrier")
        e("s_waitcnt vmcnt(21)")
        stamp(e, 1)
        arrive(e, 1)
        await_all(e, 1, peeked=False)
    else:
        e(f"""v_lshlrev_b32 v{T}, 4, v1
        v_add_u32 v{T}, {CST}, v{T}
        v_mov_b32 v{T+4}, 0
        v_mov_b32 v{T+5}, 0
        v_mov_b32 v{T+6}, 0
        v_mov_b32 v{T+7}, 0
        v_cmp_gt_u32 vcc, 32, v0
        s_nop 1
        s_and_saveexec_b64 s[42:43], vcc
        s_cbranch_execz A_nozero
        ds_write_b128 v{T}, {vr(T+4,4)}
        A_nozero:
        s_mov_b64 exec, -1
        s_waitcnt vmcnt(21) lgkmcnt(0)""")
        stamp(e, 1)
        e("s_barrier")
    stamp(e, 2)
    for r in reads(0):
        e(r)
    for step in range(20):
        p, kk = step >> 1, step & 1
        buf = step & 1
        e("s_waitcnt lgkmcnt(0)")
        if opt.get('a_steps') and step > 0:
            e(f"v_writelane_b32 v239, s56, {step}")
        ms = [(ACC + (st * 6 + t) * 4, AF + buf * 24 + t * 4, BF + buf * 8 + st * 4) for t in range(6) for st in range(2)]
        stat = []
        for st in range(2):
            stat.append((SS + 4 * st, ONES, BF + buf * 8 + st * 4))
            stat.append((SG + 4 * st, BF + buf * 8 + st * 4, BF + buf * 8 + st * 4))
        pre = opt.get('a_pre', 4)
        ms = stat + ms
        ls = opt.get('a_lsync', 1)
        if ls and kk == 1 and p < 9:
            p1, p2 = opt.get('a_p1', 4), opt.get('a_p2', 8)
            p0 = opt.get('a_p0', 0)
            for (d, a, b) in ms[:p0]:
                mfma(e, d, a, b)
            e(f"s_waitcnt vmcnt({7*(min(p+3,9)-(p+1))})")
            arrive(e, p + 2)
            for (d, a, b) in ms[p0:p1]:
                mfma(e, d, a, b)
            peek(e)
            for (d, a, b) in ms[p1:p2]:
                mfma(e, d, a, b)
            await_all(e, p + 2)
            pre = p2
        else:
            for (d, a, b) in ms[:pre]:
                mfma(e, d, a, b)
        if not ls and kk == 1 and p < 9:
            e(f"s_waitcnt vmcnt({7*(min(p+3,9)-(p+1))})")
            if not opt.get('a_nobar'):
                e("s_barrier")
        rds = reads(step + 1) if step < 19 and not opt.get('a_nords') else []
        dm = dma(p + 4) if (kk == 1 and p + 4 <= 9 and not opt.get('a_nodma')) else []
        if opt.get('a_steps'):
            e("s_memtime s[56:57]")
        per = opt.get('a_per', 3)
        for k, (d, a, b) in enumerate(ms[pre:]):
            mfma(e, d, a, b)
            for _ in range(per):
                if rds:
                    e(rds.pop(0))
            if not rds and dm:
                e("\n".join(dm.pop(0)))
        for g in dm:
            e("\n".join(g))
        lb = e.label("cs")
        e(f"s_cmp_lg_u32 s24, {step & 3}")
        e(f"s_cbranch_scc1 {lb}")
        for t in range(6):
            mfma(e, CS + 4 * t, AF + buf * 24 + 4 * t, ONES)
        e(f"{lb}:")
    stamp(e, 3)
    e(f"""s_nop 7
    v_lshlrev_b32 v{T}, 4, v3
    v_add_u32 v{T}, {CST}, v{T}
    v_cmp_eq_u32 vcc, 0, v2
    s_nop 1
    s_and_saveexec_b64 s[42:43], vcc""")
    for t in range(6):
        for r in range(4):
            e(f"ds_add_f32 v{T}, v{CS+4*t+r} offset:{64*t+4*r}")
    e("s_mov_b64 exec, -1")
    e(f"""v_and_b32 v{T+8}, 3, v2
    v_lshrrev_b32 v{T+9}, 2, v2""")
    for st in range(2):
        q = SUM + 2 + st
        e(f"v_mov_b32 v{SUM+st}, v{SS+4*st}")
        e(f"v_mov_b32 v{q}, v{SG+4*st}")
        for r in range(1, 4):
            e(f"""v_cmp_eq_u32 vcc, {r}, v{T+8}
            s_nop 1
            v_cndmask_b32 v{q}, v{q}, v{SG+4*st+r}, vcc""")
        e(f"""v_cmp_eq_u32 vcc, v{T+9}, v3
        s_nop 1
        v_cndmask_b32 v{q}, 0, v{q}, vcc""")
    for k in (2, 3):
        a, b = SUM + k, T + 8
        e(f"""v_mov_b32 v{b}, v{a}
        s_nop 1
        v_permlane16_swap_b32 v{a}, v{b}
        s_nop 1
        v_add_f32 v{a}, v{a}, v{b}
        v_mov_b32 v{b}, v{a}
        s_nop 1
        v_permlane32_swap_b32 v{a}, v{b}
        s_nop 1
        v_add_f32 v{a}, v{a}, v{b}""")
    NM, RI = T + 10, T + 14
    e("s_mov_b32 s44, 0x3acccccd")
    e("s_mov_b32 s45, 0x3727c5ac")
    for st in range(2):
        m, q = SUM + st, SUM + 2 + st
        e(f"""v_mul_f32 v{m}, s44, v{m}
        v_mul_f32 v{q}, s44, v{q}
        v_fma_f32 v{q}, -v{m}, v{m}, v{q}
        v_max_f32 v{q}, 0, v{q}
        v_cvt_pk_bf16_f32 v{m}, v{m}, v{m}
        v_cvt_pk_bf16_f32 v{q}, v{q}, v{q}
        v_lshlrev_b32 v{m}, 16, v{m}
        v_lshlrev_b32 v{q}, 16, v{q}
        v_add_f32 v{q}, s45, v{q}
        v_cvt_pk_bf16_f32 v{q}, v{q}, v{q}
        v_lshlrev_b32 v{q}, 16, v{q}
        v_sqrt_f32 v{q}, v{q}
        s_nop 0
        v_cvt_pk_bf16_f32 v{q}, v{q}, v{q}
        v_lshlrev_b32 v{q}, 16, v{q}
        v_rcp_f32 v{RI+2*st}, v{q}
        v_sub_f32 v{NM+2*st}, 0, v{m}""")
    e(f"""s_cmp_lg_u32 s26, 0
    s_cbranch_scc1 A_nostat
    v_add_u32 v{T+8}, s39, v2
    v_lshlrev_b32 v{T+8}, 3, v{T+8}
    v_add_u32 v{T+8}, {WS_ST}, v{T+8}
    v_cmp_gt_u32 vcc, 16, v1
    s_nop 1
    s_and_saveexec_b64 s[42:43], vcc""")
    for st in range(2):
        e(f"""v_mov_b32 v{T+18}, v{SUM+st}
        v_mov_b32 v{T+19}, v{RI+2*st}
        buffer_store_dwordx2 {vr(T+18,2)}, v{T+8}, s[16:19], 0 offen offset:{128*st}{SC(opt)}
        s_nop 1""")
    e("""s_mov_b64 exec, -1
    A_nostat:
    s_waitcnt lgkmcnt(0)""")
    if opt.get('a_lsync', 1):
        arrive(e, 12)
        await_all(e, 12, peeked=False)
    else:
        e("s_barrier")
    wl = []
    import kb
    if opt.get('fuse', 1) and opt.get('b_self', 0) and kb.nwl(opt):
        NW = kb.nwl(opt)
        kb.lds_wait(e, "A_wrdy", kb.S_WRDY, 1, 1)
        e(f"""s_and_b32 s50, s2, 1
        s_lshl_b32 s50, s50, 2
        s_bfe_u32 s51, s2, 0x20003
        s_add_u32 s50, s50, s51
        s_mul_i32 s50, s50, 48
        s_mul_i32 s51, s24, 12
        s_add_u32 s50, s50, s51
        s_mul_i32 s50, s50, 5120
        s_add_u32 s50, s50, {WS_W2 + 3 * 5120 - 1024}
        s_mul_i32 s51, s24, {NW * 5120}
        s_sub_u32 m0, s51, 1024
        v_lshlrev_b32 v252, 4, v1""")
        wl = ["""s_add_u32 m0, m0, 1024
        s_add_u32 s50, s50, 1024
        buffer_load_dwordx4 v252, s[16:19], s50 offen lds"""] * (NW * 5)
    stamp(e, 4)
    CSF, B1F = AF, AF + 24
    e(f"v_lshlrev_b32 v{T}, 4, v3")
    e(f"v_add_u32 v{T}, {CST}, v{T}")
    for t in range(6):
        e(f"ds_read_b128 {vr(CSF+4*t,4)}, v{T} offset:{64*t}")
    for t in range(6):
        for h in range(2):
            e(f"v_lshlrev_b32 v{B1F+4*t+2*h}, 16, v{B1+2*t+h}")
            e(f"v_and_b32 v{B1F+4*t+2*h+1}, 0xffff0000, v{B1+2*t+h}")
    C1, ONE = T + 20, T + 22
    e(f"""s_mov_b32 s46, 0xbdd2d3e8
    s_mov_b32 s47, 0xbdd2d3e8
    v_mov_b32 v{C1}, 0xc0135761
    v_mov_b32 v{C1+1}, 0xc0135761
    v_mov_b32 v{ONE}, 1.0
    v_mov_b32 v{ONE+1}, 1.0
    s_lshl_b32 s48, s25, 3
    s_lshl_b32 s49, s24, 1
    s_add_u32 s48, s48, s49
    s_mul_i32 s48, s48, 48
    s_mul_i32 s49, s26, 3
    s_add_u32 s48, s48, s49
    s_lshl_b32 s48, s48, 10
    s_add_u32 s49, s48, 49152
    v_lshlrev_b32 v{T+1}, 4, v1
    s_waitcnt lgkmcnt(0)""")
    X, Q, OUT = T + 24, T + 32, T + 40
    for st in range(2):
        for P in range(3):
            ob = OUT + 4 * ((st * 3 + P) & 3)
            for tt in range(2):
                t = 2 * P + tt
                a = ACC + (st * 6 + t) * 4
                prs = [(a + 2 * h, CSF + 4 * t + 2 * h, B1F + 4 * t + 2 * h, X + 2 * h + 4 * tt, Q + 2 * h + 4 * tt) for h in range(2)]
                if opt.get('a_nopk', 1):
                    el = [(aa + u, cs + u, b1 + u, x + u, q + u) for (aa, cs, b1, x, q) in prs for u in range(2)]
                    for tpl in ("v_fma_f32 v{x}, v{cs}, v{nm}, v{aa}", "v_fma_f32 v{x}, v{x}, v{ri}, v{b1}",
                                "v_mul_f32 v{q}, v{x}, v{x}", "v_fma_f32 v{q}, v{q}, s46, v{c1}",
                                "v_mul_f32 v{q}, v{q}, v{x}", "v_exp_f32 v{q}, v{q}", "v_add_f32 v{q}, 1.0, v{q}",
                                "v_rcp_f32 v{q}, v{q}", "v_mul_f32 v{x}, v{x}, v{q}"):
                        for (aa, cs, b1, x, q) in el:
                            e(tpl.format(aa=aa, cs=cs, b1=b1, x=x, q=q, nm=NM + 2 * st, ri=RI + 2 * st, c1=C1))
                else:
                    for (aa, cs, b1, x, q) in prs:
                        e(f"v_pk_fma_f32 {vr(x,2)}, {vr(cs,2)}, {vr(NM+2*st,2)}, {vr(aa,2)} op_sel_hi:[1,0,1]")
                    for (aa, cs, b1, x, q) in prs:
                        e(f"v_pk_fma_f32 {vr(x,2)}, {vr(x,2)}, {vr(RI+2*st,2)}, {vr(b1,2)} op_sel_hi:[1,0,1]")
                    for (aa, cs, b1, x, q) in prs:
                        e(f"v_pk_mul_f32 {vr(q,2)}, {vr(x,2)}, {vr(x,2)}")
                    for (aa, cs, b1, x, q) in prs:
                        e(f"v_pk_fma_f32 {vr(q,2)}, {vr(q,2)}, s[46:47], {vr(C1,2)}")
                    for (aa, cs, b1, x, q) in prs:
                        e(f"v_pk_mul_f32 {vr(q,2)}, {vr(q,2)}, {vr(x,2)}")
                    for (aa, cs, b1, x, q) in prs:
                        e(f"v_exp_f32 v{q}, v{q}")
                        e(f"v_exp_f32 v{q+1}, v{q+1}")
                    for (aa, cs, b1, x, q) in prs:
                        e(f"v_pk_add_f32 {vr(q,2)}, {vr(q,2)}, {vr(ONE,2)}")
                    for (aa, cs, b1, x, q) in prs:
                        e(f"v_rcp_f32 v{q}, v{q}")
                        e(f"v_rcp_f32 v{q+1}, v{q+1}")
                    for (aa, cs, b1, x, q) in prs:
                        e(f"v_pk_mul_f32 {vr(x,2)}, {vr(x,2)}, {vr(q,2)}")
                for h, (aa, cs, b1, x, q) in enumerate(prs):
                    e(f"v_cvt_pk_bf16_f32 v{ob+2*tt+h}, v{x}, v{x+1}")
                if tt == 0:
                    for _ in range(opt.get('b_wlper', 3)):
                        if wl:
                            e(wl.pop(0))
            e(f"buffer_store_dwordx4 {vr(ob,4)}, v{T+1}, s[16:19], s{48+st} offen offset:{1024*P}{SC(opt)}")
            for _ in range(5):
                if wl:
                    e(wl.pop(0))
    for g in wl:
        e(g)
    if opt.get('a_steps'):
        e(f"""s_lshl_b32 s58, s2, 2
        s_add_u32 s58, s58, s24
        s_lshl_b32 s58, s58, 8
        s_add_u32 s58, s58, {WS_Z}
        v_lshlrev_b32 v238, 2, v1
        buffer_store_dword v239, v238, s[16:19], s58 offen""")
    if opt.get('fuse', 1):
        endp(e, 0, False)
        import kb
        kb.gemm2(e, opt)
    else:
        endp(e, 0)


def prefetch_a(e, opt):
    e("s_load_dwordx2 s[40:41], s[0:1], %d" % KA['q'])
    e("s_load_dwordx2 s[42:43], s[0:1], %d" % KA['w1'])
    e("""s_and_b32 s44, s2, 7
    s_lshr_b32 s45, s2, 3
    s_sub_u32 s46, s24, 4
    s_mul_i32 s47, s46, 48
    v_add_u32 v4, s47, v1
    s_mov_b32 s48, 5462
    v_mul_lo_u32 v5, v4, s48
    v_lshrrev_b32 v5, 16, v5
    v_mul_u32_u24 v6, 12, v5
    v_sub_u32 v6, v4, v6
    s_lshr_b32 s47, s44, 1
    s_lshl_b32 s47, s47, 9
    s_lshl_b32 s49, s45, 4
    s_add_u32 s47, s47, s49
    v_add_u32 v5, s47, v5
    v_mul_u32_u24 v5, 1280, v5
    v_lshlrev_b32 v6, 6, v6
    v_add_u32 v5, v5, v6
    v_add_u32 v5, 512, v5
    v_bfrev_b32 v7, 1
    v_cmp_gt_u32 vcc, 48, v1
    s_nop 1
    v_cndmask_b32 v5, v7, v5, vcc
    s_mul_i32 s47, s46, 72
    s_mul_i32 s49, s45, 12
    s_add_u32 s49, s49, 256
    s_and_b32 s50, s44, 1
    s_mul_i32 s50, s50, 1536
    s_mov_b32 s48, 2731""")
    for h in range(2):
        e(f"""v_add_u32 v4, s47, v1
        v_add_u32 v4, {64*h}, v4
        v_mul_lo_u32 v8, v4, s48
        v_lshrrev_b32 v8, 16, v8
        v_mul_u32_u24 v6, 24, v8
        v_sub_u32 v6, v4, v6
        v_add_u32 v8, s49, v8
        v_mul_u32_u24 v8, 3072, v8
        v_lshlrev_b32 v6, 6, v6
        v_add_u32 v8, v8, v6
        v_add_u32 v{9+h}, s50, v8""")
    e("""v_cmp_gt_u32 vcc, 8, v1
    s_nop 1
    v_cndmask_b32 v10, v7, v10, vcc
    s_waitcnt lgkmcnt(0)""")
    srd(e, 52, 40, S * 1280)
    srd(e, 56, 42, D * 3072)
    e("""buffer_load_dword v252, v5, s[52:55], 0 offen
    buffer_load_dword v253, v9, s[56:59], 0 offen
    buffer_load_dword v254, v10, s[56:59], 0 offen""")


def conv(e, opt):
    ACC = 8
    FI, UI, AL = 40, 64, 80
    e("s_load_dwordx2 s[4:5], s[0:1], %d" % KA['ssm'])
    e("s_load_dwordx2 s[6:7], s[0:1], %d" % KA['Dv'])
    e("s_load_dwordx2 s[32:33], s[0:1], %d" % KA['dbg'])
    e("""s_and_b32 s25, s2, 7
    s_lshr_b32 s26, s2, 3
    s_sub_u32 s27, s24, 4
    s_cmp_eq_u32 s27, 3
    s_cbranch_scc1 A_cend
    s_mul_i32 s28, s25, 80
    s_add_u32 s28, s28, s27
    s_cmp_ge_u32 s26, 16
    s_cbranch_scc1 A_two
    s_mul_i32 s29, s26, 3
    s_branch A_chan
    A_two:
    s_cmp_eq_u32 s27, 2
    s_cbranch_scc1 A_cend
    s_lshl_b32 s29, s26, 1
    s_add_u32 s29, s29, 16
    A_chan:
    s_add_u32 s28, s28, s29""")
    e(f"""s_mul_i32 s30, s27, {CONV_LDS}
    s_add_u32 s30, s30, {PREP}
    s_lshl_b32 s36, s28, 12
    v_lshlrev_b32 v4, 4, v1
    s_waitcnt lgkmcnt(0)""")
    srd(e, 8, 4, D * 4096)
    srd(e, 12, 6, D * 2)
    srd(e, 20, 32, 256)
    UB = 2 * 4160
    e("s_mov_b32 s37, s36")
    for q in range(4):
        e(f"buffer_load_dwordx4 {vr(FI+6*q,4)}, v4, s[8:11], s37 offen")
        e(f"buffer_load_dword v{FI+6*q+4}, v4, s[8:11], s37 offen offset:16")
        e("s_add_u32 s37, s37, 1024")
    e(f"""v_and_b32 v205, 1, v3
    v_add_u32 v200, v2, v205
    v_subrev_u32 v200, 16, v200
    v_lshlrev_b32 v201, 1, v200
    v_add_u32 v201, s36, v201
    v_cmp_gt_i32 vcc, 0, v200
    v_bfrev_b32 v202, 1
    s_nop 0
    v_cndmask_b32 v201, v201, v202, vcc
    buffer_load_ushort v204, v201, s[8:11], 0 offen
    s_lshl_b32 s38, s28, 1
    v_mov_b32 v201, s38
    buffer_load_ushort v206, v201, s[12:15], 0 offen
    v_mul_u32_u24 v202, 4160, v205
    v_lshlrev_b32 v203, 1, v2
    v_add_u32 v202, v202, v203
    v_add_u32 v202, s30, v202""")
    def lds_wait(name, addr, val, all4, sleep):
        e(f"v_mov_b32 v{SYB}, {addr}")
        e(f"{name}:")
        if all4:
            e(f"""ds_read_b128 {vr(SY0,4)}, v{SYB}
            s_waitcnt lgkmcnt(0)
            v_min3_u32 v{SY0}, v{SY0}, v{SY0+1}, v{SY0+2}
            v_min_u32 v{SY0}, v{SY0}, v{SY0+3}""")
        else:
            e(f"""ds_read_b32 v{SY0}, v{SYB}
            s_waitcnt lgkmcnt(0)""")
        e(f"""v_cmp_gt_u32 vcc, {val}, v{SY0}
        s_nop 1
        s_cbranch_vccz {name}_ok
        s_sleep {sleep}
        s_branch {name}
        {name}_ok:""")
    e("""s_cmp_lg_u32 s27, 0
    s_cbranch_scc1 A_follow""")
    e(f"""v_mov_b32 v210, 0
    s_mov_b32 s40, 0
    A_seen:
    buffer_load_dword v212, v210, s[20:23], 0 offen sc1
    s_add_u32 s40, s40, 1
    s_waitcnt vmcnt(0)
    v_readfirstlane_b32 s38, v212
    s_cmp_eq_u32 s38, 1
    s_cbranch_scc1 A_seen_ok
    s_cmp_ge_u32 s40, 0x40000
    s_cbranch_scc1 A_seen_ok
    s_sleep 8
    s_branch A_seen
    A_seen_ok:""")
    if opt.get('c_gate', 0):
        lds_wait("A_stage", SYNC + 24, opt['c_gate'], False, 4)
    else:
        lds_wait("A_stage", SYNC, opt.get('c_stage', 5) + 1, True, 2)
    e(f"""s_cmp_ge_u32 s26, 16
    s_cselect_b32 s38, 1, 2
    s_add_u32 s38, s38, s28
    s_lshr_b32 s38, s38, 6
    s_lshl_b32 s38, s38, 4
    s_lshr_b32 s39, s28, 6
    s_lshl_b32 s39, s39, 4
    v_mov_b32 v210, s38
    v_mov_b32 v211, s39
    v_and_b32 v212, 16, v1
    v_cmp_eq_u32 vcc, 0, v212
    s_mov_b32 s40, 0
    v_cndmask_b32 v210, v210, v211, vcc
    v_add_u32 v210, v210, v2
    v_lshlrev_b32 v210, 7, v210
    v_add_u32 v210, {WS_FL}, v210
    A_poll:
    s_add_u32 s40, s40, 1
    s_cmp_ge_u32 s40, 0x40000
    s_cbranch_scc1 A_ready
    buffer_load_dword v212, v210, s[16:19], 0 offen sc1
    s_waitcnt vmcnt(0)
    v_cmp_ne_u32 vcc, 1, v212
    s_nop 1
    s_cbranch_vccz A_ready
    s_sleep {opt.get('c_sleep', 8)}
    s_branch A_poll
    A_ready:
    v_mov_b32 v210, {SYNC + 20}
    v_mov_b32 v211, 1
    s_mov_b64 exec, 1
    ds_write_b32 v210, v211
    s_mov_b64 exec, -1
    s_branch A_go
    A_follow:""")
    lds_wait("A_fw", SYNC + 20, 1, False, 2)
    e("A_go:")
    stamp(e, 3)
    e(f"s_add_u32 s37, s36, {WS_U}")
    for q in range(4):
        e(f"buffer_load_dwordx4 {vr(UI+4*q,4)}, v4, s[16:19], s37 offen sc1")
        e("s_add_u32 s37, s37, 1024")
    stamp(e, 4)
    e(f"s_setprio {opt.get('c_prio', 1)}")
    e(f"""v_add_u32 v207, s30, v4
    v_lshlrev_b32 v201, 3, v1
    v_add_u32 v201, s30, v201
    v_mov_b32 v208, 0
    v_mov_b32 v209, 0
    ds_write_b64 v201, v[208:209] offset:{UB}
    s_waitcnt vmcnt(4)
    ds_write_b16 v202, v204
    v_lshlrev_b32 v7, 16, v206""")
    for q in range(4):
        f = FI + 6 * q
        a = AL + 8 * (q & 1)
        e(f"ds_write_b128 v207, {vr(f,4)} offset:{32+1024*q}")
        for k in range(4):
            e(f"v_alignbyte_b32 v{a+k}, v{f+k+1}, v{f+k}, 2")
        e(f"ds_write_b128 v207, {vr(a,4)} offset:{4160+32+1024*q}")
    e("s_waitcnt vmcnt(0)")
    for q in range(4):
        e(f"ds_write_b128 v207, {vr(UI+4*q,4)} offset:{UB+512+1024*q}")
    e(f"""v_lshlrev_b32 v201, 3, v3
    v_sub_u32 v201, v2, v201
    v_add_u32 v201, 9, v201
    v_and_b32 v203, 1, v201
    v_sub_u32 v201, v201, v203
    v_add_u32 v201, 16, v201
    v_lshlrev_b32 v201, 1, v201
    v_mul_u32_u24 v203, 4160, v203
    v_add_u32 v201, v201, v203
    v_add_u32 v212, s30, v201
    v_add_u32 v213, 1024, v212
    v_add_u32 v214, 2048, v212
    v_add_u32 v215, 3072, v212
    v_lshlrev_b32 v201, 5, v2
    v_lshlrev_b32 v203, 4, v3
    v_add_u32 v201, v201, v203
    v_add_u32 v201, s30, v201
    v_add_u32 v6, {UB+480-448}, v201""")
    for r in range(32):
        e(f"v_mov_b32 v{ACC+r}, 0")
    e("s_waitcnt lgkmcnt(0)")

    def rd(j0):
        out = []
        for i in range(8):
            a = (40 if (j0 & 1) == 0 else 104) + 4 * i
            b = (72 if (j0 & 1) == 0 else 136) + 4 * i
            out.append(f"ds_read_b128 {vr(b,4)}, v6 offset:{448 + 64*(8*i - j0)}")
            o = 128 * (i & 1) + 16 * j0
            out.append(f"ds_read2_b32 {vr(a,2)}, v{212+(i>>1)} offset0:{o} offset1:{o+1}")
            out.append(f"ds_read2_b32 {vr(a+2,2)}, v{212+(i>>1)} offset0:{o+2} offset1:{o+3}")
        return out

    for r in rd(0):
        e(r)
    for j0 in range(8):
        a0 = 40 if (j0 & 1) == 0 else 104
        b0 = 72 if (j0 & 1) == 0 else 136
        fill = rd(j0 + 1) if j0 < 7 else []
        e("s_waitcnt lgkmcnt(0)")
        n = 0
        for i in range(8):
            for c in range(i, 8):
                mfma(e, ACC + 4 * c, a0 + 4 * i, b0 + 4 * (c - i))
                if fill and n < 24:
                    e(fill.pop(0))
                n += 1
    stamp(e, 5)
    UV = 40
    e(f"""v_lshrrev_b32 v201, 1, v3
    v_lshlrev_b32 v201, 4, v201
    v_and_b32 v203, 1, v3
    v_xor_b32 v203, 1, v203
    v_lshlrev_b32 v203, 3, v203
    v_add_u32 v201, v201, v203
    v_lshlrev_b32 v203, 5, v2
    v_add_u32 v201, v201, v203
    v_add_u32 v201, s30, v201
    v_lshlrev_b32 v202, 3, v3
    v_add_u32 v202, v202, v203
    s_add_u32 s37, s36, {WS_Z}""")
    for c in range(8):
        e(f"ds_read_b64 {vr(UV+2*c,2)}, v201 offset:{UB+512+512*c}")
    e("s_waitcnt lgkmcnt(0)")
    for c in range(8):
        a, u, t = ACC + 4 * c, UV + 2 * c, 60 + 8 * (c & 1)
        e(f"""v_cvt_pk_bf16_f32 v{t}, v{a}, v{a+1}
        v_cvt_pk_bf16_f32 v{t+1}, v{a+2}, v{a+3}
        v_lshlrev_b32 v{a}, 16, v{t}
        v_and_b32 v{a+1}, 0xffff0000, v{t}
        v_lshlrev_b32 v{a+2}, 16, v{t+1}
        v_and_b32 v{a+3}, 0xffff0000, v{t+1}
        v_and_b32 v{t+2}, 0xffff0000, v{u+1}
        v_lshlrev_b32 v{t+3}, 16, v{u+1}
        v_and_b32 v{t+4}, 0xffff0000, v{u}
        v_lshlrev_b32 v{t+5}, 16, v{u}
        v_fma_f32 v{a}, v{t+2}, v7, v{a}
        v_fma_f32 v{a+1}, v{t+3}, v7, v{a+1}
        v_fma_f32 v{a+2}, v{t+4}, v7, v{a+2}
        v_fma_f32 v{a+3}, v{t+5}, v7, v{a+3}
        v_cvt_pk_bf16_f32 v{80+2*c}, v{a}, v{a+1}
        v_cvt_pk_bf16_f32 v{81+2*c}, v{a+2}, v{a+3}
        buffer_store_dwordx2 {vr(80+2*c,2)}, v202, s[16:19], s37 offen offset:{512*c}{SC(opt)}""")
    if opt.get('fuse', 1):
        e(f"""s_waitcnt vmcnt(0)
        v_mov_b32 v9, {SYNC + 28}
        v_mov_b32 v10, 1
        v_mov_b32 v12, 0
        s_mov_b64 exec, 1
        ds_add_rtn_u32 v11, v9, v10
        s_cmp_ge_u32 s26, 16
        s_cselect_b32 s39, 1, 2
        s_waitcnt lgkmcnt(0)
        v_readfirstlane_b32 s38, v11
        s_cmp_lg_u32 s38, s39
        s_cbranch_scc1 A_nozflag
        s_lshl_b32 s38, s2, 7
        s_add_u32 s38, s38, {WS_FL + 8}
        buffer_store_dword v10, v12, s[16:19], s38 offen sc1
        A_nozflag:
        s_mov_b64 exec, -1""")
    endp(e, 0)
    e("A_cend:")
    if opt.get('fuse', 1):
        e("""s_cmp_eq_u32 s24, 7
        s_cbranch_scc1 B_aux""")
    endp(e, 0)


def prep(e, opt):
    e("""s_lshl_b32 s25, s2, 2
    s_add_u32 s25, s25, s24
    s_sub_u32 s25, s25, 4
    s_sub_u32 s26, s24, 4
    s_mul_i32 s26, s26, %d""" % CONV_LDS)
    e(f"s_add_u32 s26, s26, {PREP}")
    e("s_load_dwordx2 s[34:35], s[0:1], %d" % KA['ws'])
    if opt.get('a_early', 1) == 1:
        e("s_barrier")
    if opt.get('p_prio', 0):
        e(f"s_setprio {opt['p_prio']}")
    if opt.get('a_pf', 0):
        prefetch_a(e, opt)
    e("s_cmp_ge_u32 s25, 640")
    e("s_cbranch_scc1 A_w2prep")
    e("s_load_dwordx2 s[4:5], s[0:1], %d" % KA['k'])
    e("s_load_dwordx2 s[6:7], s[0:1], %d" % KA['v'])
    e("s_load_dwordx2 s[32:33], s[0:1], %d" % KA['shift'])
    e("""s_lshr_b32 s28, s2, 4
    s_and_b32 s27, s2, 15
    s_lshl_b32 s27, s27, 2
    s_add_u32 s27, s27, s24
    s_sub_u32 s27, s27, 4
    v_lshrrev_b32 v4, 3, v1
    v_and_b32 v5, 7, v1
    s_lshl_b32 s29, s27, 5
    v_lshlrev_b32 v6, 2, v4
    v_add_u32 v6, s29, v6
    v_mul_u32_u24 v6, 1280, v6
    s_lshl_b32 s30, s28, 7
    v_lshlrev_b32 v7, 4, v5
    v_add_u32 v7, s30, v7
    v_add_u32 v6, v6, v7
    v_lshlrev_b32 v8, 2, v7
    s_waitcnt lgkmcnt(0)""")
    srd(e, 8, 4, S * 1280)
    srd(e, 12, 6, S * 1280)
    srd(e, 20, 32, D * 8)
    srd(e, 16, 34, WS_END)
    K, V, W = 16, 44, 60
    for t in range(7):
        e(f"v_add_u32 v{9}, {(t-3)*1280 & 0xffffffff}, v6")
        e(f"buffer_load_dwordx4 {vr(K+4*t,4)}, v9, s[8:11], 0 offen")
    for t in range(4):
        e(f"buffer_load_dwordx4 {vr(V+4*t,4)}, v6, s[12:15], 0 offen offset:{1280*t}")
    for t in range(4):
        e(f"buffer_load_dwordx4 {vr(W+4*t,4)}, v8, s[20:23], 0 offen offset:{16*t}")
    e("s_load_dwordx2 s[6:7], s[0:1], %d" % KA['dbg'])
    e(f"""s_cmp_lg_u32 s25, 3
    s_cbranch_scc1 A_noclr
    v_lshlrev_b32 v9, 7, v1
    v_mov_b32 v10, 0
    v_mov_b32 v11, 0
    v_mov_b32 v12, 0
    v_mov_b32 v13, 0
    s_mov_b32 s38, {WS_FL}
    buffer_store_dwordx4 v[10:13], v9, s[16:19], s38 offen sc1
    s_add_u32 s38, s38, 8192
    buffer_store_dwordx4 v[10:13], v9, s[16:19], s38 offen sc1
    s_add_u32 s38, s38, 8192
    buffer_store_dwordx4 v[10:13], v9, s[16:19], s38 offen sc1
    s_add_u32 s38, s38, 8192
    buffer_store_dwordx4 v[10:13], v9, s[16:19], s38 offen sc1
    A_noclr:
    s_waitcnt lgkmcnt(0)""")
    srd(e, 40, 6, 256)
    if opt.get('a_early', 1) != 1:
        e("s_barrier")
    if 'p_prio2' in opt:
        e(f"s_setprio {opt['p_prio2']}")
    stamp(e, 1)
    e("s_waitcnt vmcnt(0)")
    e(f"""s_cmp_lg_u32 s25, 3
    s_cbranch_scc1 A_noann
    v_mov_b32 v9, 0
    v_mov_b32 v10, 1
    s_mov_b64 exec, 1
    buffer_store_dword v10, v9, s[40:43], 0 offen sc1
    s_mov_b64 exec, -1
    A_noann:""")
    stamp(e, 2)
    KF, WF, VF, R, PK = 80, 136, 168, 200, 232
    for t in range(7):
        for r in range(4):
            e(f"v_lshlrev_b32 v{KF+8*t+2*r}, 16, v{K+4*t+r}")
            e(f"v_and_b32 v{KF+8*t+2*r+1}, 0xffff0000, v{K+4*t+r}")
    for r in range(16):
        e(f"v_lshlrev_b32 v{WF+2*r}, 16, v{W+r}")
        e(f"v_and_b32 v{WF+2*r+1}, 0xffff0000, v{W+r}")
    if not opt.get('a_lsync', 1):
        e("s_barrier")
    for r in range(16):
        e(f"v_lshlrev_b32 v{VF+2*r}, 16, v{V+r}")
        e(f"v_and_b32 v{VF+2*r+1}, 0xffff0000, v{V+r}")
    for i in range(4):
        for j in range(4):
            for c in range(8):
                k = KF + 8 * (i + 3 - j) + c
                wv = WF + 4 * c + j
                if j == 0:
                    e(f"v_mul_f32 v{R+8*i+c}, v{k}, v{wv}")
                else:
                    e(f"v_fma_f32 v{R+8*i+c}, v{k}, v{wv}, v{R+8*i+c}")
        for c in range(8):
            e(f"v_mul_f32 v{R+8*i+c}, v{R+8*i+c}, v{VF+8*i+c}")
        if i & 1 and not opt.get('a_lsync', 1):
            e("s_barrier")
    for c in range(8):
        e(f"v_cvt_pk_bf16_f32 v{PK+2*c}, v{R+24+c}, v{R+16+c}")
        e(f"v_cvt_pk_bf16_f32 v{PK+2*c+1}, v{R+8+c}, v{R+c}")
    e("""v_lshlrev_b32 v9, 5, v5
    v_lshrrev_b32 v10, 1, v4
    v_add_u32 v9, v9, v10
    v_and_b32 v10, 1, v4
    v_xor_b32 v10, 1, v10
    v_lshlrev_b32 v10, 3, v10
    v_add_u32 v10, s26, v10""")
    for c in range(8):
        e(f"""v_add_u32 v11, {4*c}, v9
        v_xor_b32 v11, v11, v5
        v_lshlrev_b32 v11, 4, v11
        v_add_u32 v11, v11, v10
        ds_write_b64 v11, {vr(PK+2*c,2)}""")
    e(f"""v_lshlrev_b32 v9, 4, v1
    v_add_u32 v9, s26, v9
    s_lshl_b32 s30, s28, 18
    s_lshl_b32 s31, s27, 6
    s_add_u32 s30, s30, s31
    s_add_u32 s30, s30, {WS_U}
    s_waitcnt lgkmcnt(0)""")
    for q in range(4):
        e(f"ds_read_b128 {vr(16+4*q,4)}, v9 offset:{1024*q}")
    for q in range(4):
        e(f"""v_lshrrev_b32 v10, 5, v1
        v_add_u32 v10, {2*q}, v10
        v_add_u32 v11, {64*q}, v1
        v_xor_b32 v11, v11, v10
        v_lshrrev_b32 v10, 2, v11
        v_and_b32 v11, 3, v11
        v_lshlrev_b32 v10, 12, v10
        v_lshlrev_b32 v11, 4, v11
        v_add_u32 v{40+q}, v10, v11""")
    for q in range(4):
        e(f"s_waitcnt lgkmcnt({3-q})")
        e(f"buffer_store_dwordx4 {vr(16+4*q,4)}, v{40+q}, s[16:19], s30 offen sc1")
    e(f"""s_mov_b32 s49, {WS_FL}
    A_post:
    v_mov_b32 v12, 0
    buffer_load_dword v13, v12, s[40:43], 0 offen sc1
    s_waitcnt vmcnt(0)
    v_mov_b32 v9, {SYNC + 16}
    v_mov_b32 v10, 1
    s_mov_b64 exec, 1
    ds_add_rtn_u32 v11, v9, v10
    s_waitcnt lgkmcnt(0)
    v_readfirstlane_b32 s38, v11
    s_cmp_lg_u32 s38, 3
    s_cbranch_scc1 A_noflag
    s_mov_b32 s39, 0
    A_clr:
    v_readfirstlane_b32 s38, v13
    s_cmp_eq_u32 s38, 1
    s_cbranch_scc1 A_flag
    s_add_u32 s39, s39, 1
    s_cmp_ge_u32 s39, 0x40000
    s_cbranch_scc1 A_flag
    s_sleep 8
    buffer_load_dword v13, v12, s[40:43], 0 offen sc1
    s_waitcnt vmcnt(0)
    s_branch A_clr
    A_flag:
    s_lshl_b32 s38, s2, 7
    s_add_u32 s38, s38, s49
    buffer_store_dword v10, v12, s[16:19], s38 offen sc1
    A_noflag:
    s_mov_b64 exec, -1
    s_branch A_conv""")
    e("A_w2prep:")
    e("s_load_dwordx2 s[4:5], s[0:1], %d" % KA['w2'])
    e("s_load_dwordx2 s[6:7], s[0:1], %d" % KA['dbg'])
    e("""s_sub_u32 s25, s25, 640
    s_mul_i32 s27, s25, 1366
    s_lshr_b32 s27, s27, 16
    s_mul_i32 s28, s27, 48
    s_sub_u32 s28, s25, s28
    s_mul_i32 s29, s28, 40960
    s_mul_i32 s30, s27, 160
    s_add_u32 s29, s29, s30
    s_mov_b32 s38, 6554
    s_waitcnt lgkmcnt(0)""")
    srd(e, 8, 4, F * 1280)
    srd(e, 16, 34, WS_END)
    srd(e, 40, 6, 256)
    for q in range(5):
        e(f"""v_add_u32 v4, {64*q}, v1
        v_mul_lo_u32 v5, v4, s38
        v_lshrrev_b32 v5, 16, v5
        v_mul_u32_u24 v6, 10, v5
        v_sub_u32 v6, v4, v6
        v_mul_u32_u24 v5, 1280, v5
        v_lshlrev_b32 v6, 4, v6
        v_add_u32 v5, v5, v6
        s_add_u32 m0, s26, {1024*q}
        s_nop 0
        buffer_load_dwordx4 v5, s[8:11], s29 offen lds""")
    if opt.get('a_early', 1) != 1:
        e("s_barrier")
    e(f"""v_bfe_u32 v4, v1, 2, 2
    v_lshlrev_b32 v5, 2, v3
    v_add_u32 v4, v4, v5
    v_mul_u32_u24 v4, 160, v4
    v_and_b32 v5, 3, v1
    v_lshlrev_b32 v5, 3, v5
    v_add_u32 v4, v4, v5
    v_add_u32 v4, s26, v4
    s_mul_i32 s30, s25, 5120
    s_add_u32 s30, s30, {WS_W2}
    v_lshlrev_b32 v6, 4, v1
    v_add_u32 v7, 4096, v6
    s_waitcnt vmcnt(0)""")
    for t in range(5):
        for h in range(2):
            e(f"ds_read_b64_tr_b16 {vr(16+4*t+2*h,2)}, v4 offset:{32*t+2560*h}")
    e("s_waitcnt lgkmcnt(0)")
    for t in range(5):
        e(f"buffer_store_dwordx4 {vr(16+4*t,4)}, v{7 if t==4 else 6}, s[16:19], s30 offen offset:{0 if t==4 else 1024*t}{SC(opt)}")
    if opt.get('fuse', 1):
        e(f"""s_mov_b32 s49, {WS_FL + 12}
        s_branch A_post""")
    e("s_waitcnt vmcnt(0)")
    e("A_conv:")
    conv(e, opt)


def kernel_a(e, label, opt):
    e(f".globl {label}\n.p2align 8\n.type {label},@function\n{label}:")
    e("""s_cmp_ge_u32 s2, 256
    s_cbranch_scc1 A_exit
    v_lshrrev_b32 v1, 6, v0
    s_nop 0
    v_readfirstlane_b32 s24, v1
    v_and_b32 v1, 63, v0
    v_and_b32 v2, 15, v1
    v_lshrrev_b32 v3, 4, v1
    s_nop 1
    """)
    stamp(e, 0)
    e("""s_cmp_ge_u32 s24, 4
    s_cbranch_scc1 A_prep""")
    gemm1(e, opt)
    e("A_prep:")
    prep(e, opt)
    if opt.get('fuse', 1):
        import kb
        e("B_aux:")
        kb.aux(e, opt)
    e("A_exit:")
    e("s_endpgm")
```

```python
from common import *
CONV_LDS = 12928

ACC, CS, AF, BF = 16, 64, 88, 136
SUM, ONES, VW, VXD, VX0, VX1, VE, VO, B1 = 152, 156, 160, 163, 164, 165, 166, 167, 168
T = 180
SS, SG = 236, 244
XR = 49152
CST = 114688
PREP = 115200
LDS_A = PREP + 3 * CONV_LDS + 5120
SYNC = CST + 384
SY0, SYS, SYB, SYV = 228, 232, 233, 234


def SC(opt):
    return " sc1" if opt.get('fuse', 1) else ""


def arrive(e, val):
    e(f"""v_mov_b32 v{SYV}, {val}
    s_mov_b64 exec, 1
    ds_write_b32 v{SYS}, v{SYV}
    s_mov_b64 exec, -1""")


def peek(e):
    e(f"ds_read_b128 {vr(SY0,4)}, v{SYB}")


def await_all(e, val, peeked=True):
    again, done = e.label("sy"), e.label("sd")
    if not peeked:
        e(f"{again}:")
        peek(e)
    body = f"""s_waitcnt lgkmcnt(0)
    v_min3_u32 v{SY0}, v{SY0}, v{SY0+1}, v{SY0+2}
    v_min_u32 v{SY0}, v{SY0}, v{SY0+3}
    v_cmp_gt_u32 vcc, {val}, v{SY0}
    s_nop 1"""
    e(body)
    if not peeked:
        e(f"s_cbranch_vccnz {again}")
        return
    e(f"s_cbranch_vccz {done}")
    e(f"{again}:")
    peek(e)
    e(body)
    e(f"s_cbranch_vccnz {again}")
    e(f"{done}:")


def gemm1(e, opt):
    e(f"s_setprio {opt.get('a_prio', 2)}")
    EA = opt.get('a_early', 2)
    def kernargs():
        e("s_load_dwordx2 s[4:5], s[0:1], %d" % KA['q'])
        e("s_load_dwordx2 s[6:7], s[0:1], %d" % KA['w1'])
        e("s_load_dwordx2 s[32:33], s[0:1], %d" % KA['b1'])
        e("s_load_dwordx2 s[34:35], s[0:1], %d" % KA['ws'])
    if EA == 2:
        kernargs()
    if EA:
        e(f"""v_lshlrev_b32 v{T}, 4, v1
        v_add_u32 v{T}, {CST}, v{T}
        v_mov_b32 v{T+4}, 0
        v_mov_b32 v{T+5}, 0
        v_mov_b32 v{T+6}, 0
        v_mov_b32 v{T+7}, 0
        v_cmp_gt_u32 vcc, 32, v0
        s_nop 1
        s_and_saveexec_b64 s[42:43], vcc
        s_cbranch_execz A_nozero0
        ds_write_b128 v{T}, {vr(T+4,4)}
        A_nozero0:
        s_mov_b64 exec, -1""")
    if EA == 1:
        e("""s_waitcnt lgkmcnt(0)
        s_barrier""")
    if EA != 2:
        kernargs()
    e("""s_and_b32 s27, s2, 7
    s_lshr_b32 s28, s2, 3
    s_lshr_b32 s25, s27, 1
    s_lshl_b32 s25, s25, 2
    s_and_b32 s29, s28, 3
    s_add_u32 s25, s25, s29
    s_and_b32 s26, s27, 1
    s_lshl_b32 s26, s26, 3
    s_lshr_b32 s29, s28, 2
    s_add_u32 s26, s26, s29
    s_mul_i32 s30, s24, 3072
    s_lshl_b32 s31, s24, 12""")
    e("s_mul_i32 s36, s24, 192")
    e("s_mul_i32 s37, s26, 192")
    e("s_mov_b32 s38, 43691")
    for ii in range(3):
        e(f"""v_add_u32 v{T}, s36, v1
        v_add_u32 v{T}, {64*ii}, v{T}
        v_mul_lo_u32 v{T+1}, v{T}, s38
        v_lshrrev_b32 v{T+1}, 19, v{T+1}
        v_mul_u32_u24 v{T+2}, 12, v{T+1}
        v_sub_u32 v{T+2}, v{T}, v{T+2}
        v_lshrrev_b32 v{T+3}, 2, v{T+1}
        v_and_b32 v{T+3}, 2, v{T+3}
        v_xor_b32 v{T+2}, v{T+2}, v{T+3}
        v_lshlrev_b32 v{T+2}, 4, v{T+2}
        v_mul_u32_u24 v{T+1}, 3072, v{T+1}
        v_add_u32 v{T+1}, v{T+1}, v{T+2}
        v_add_u32 v{VW+ii}, s37, v{T+1}""")
    e(f"""s_lshl_b32 s39, s25, 7
    s_lshl_b32 s40, s24, 5
    s_add_u32 s39, s39, s40
    v_lshrrev_b32 v{T}, 3, v1
    v_and_b32 v{T+1}, 7, v1
    v_xor_b32 v{T+1}, v{T+1}, v{T}
    v_lshlrev_b32 v{T+1}, 4, v{T+1}
    v_add_u32 v{T}, s39, v{T}
    v_mul_u32_u24 v{T}, 1280, v{T}
    v_add_u32 v{VXD}, v{T}, v{T+1}""")
    e(f"""v_and_b32 v{T}, 7, v2
    v_xor_b32 v{T}, v{T}, v3
    v_lshlrev_b32 v{T}, 4, v{T}
    v_lshlrev_b32 v{T+1}, 7, v2
    v_add_u32 v{T}, v{T}, v{T+1}
    v_add_u32 v{T}, s31, v{T}
    v_add_u32 v{VX0}, {XR}, v{T}
    v_xor_b32 v{VX1}, 64, v{VX0}
    v_bfe_u32 v{T}, v1, 2, 2
    v_lshlrev_b32 v{T+1}, 3, v3
    v_add_u32 v{T}, v{T}, v{T+1}
    v_mul_u32_u24 v{T}, 192, v{T}
    v_and_b32 v{T+1}, 3, v1
    v_lshlrev_b32 v{T+1}, 3, v{T+1}
    v_add_u32 v{T}, v{T}, v{T+1}
    v_and_b32 v{T+1}, 1, v3
    v_lshlrev_b32 v{T+1}, 5, v{T+1}
    v_add_u32 v{VE}, v{T}, v{T+1}
    v_sub_u32 v{VO}, v{T}, v{T+1}""")
    e("s_waitcnt lgkmcnt(0)")
    srd(e, 8, 4, S * 1280)
    srd(e, 12, 6, D * 3072)
    srd(e, 16, 34, WS_END)
    srd(e, 20, 32, F * 2)
    e(f"""v_lshlrev_b32 v{T}, 3, v3
    v_add_u32 v{T}, s37, v{T}""")
    for t in range(6):
        e(f"buffer_load_dwordx2 {vr(B1+2*t,2)}, v{T}, s[20:23], 0 offen offset:{32*t}")

    def dma(p):
        out = []
        sg = p & 3
        for ii in range(3):
            out.append([f"s_add_u32 m0, s30, {sg*12288+ii*1024}", f"s_mov_b32 s41, {196608*p}",
                        f"buffer_load_dwordx4 v{VW+ii}, s[12:15], s41 offen lds"])
        for q in range(4):
            out.append([f"s_add_u32 m0, s31, {XR+sg*16384+q*1024}", f"s_mov_b32 s41, {10240*q+128*p}",
                        f"buffer_load_dwordx4 v{VXD}, s[8:11], s41 offen lds"])
        return out

    def reads(step):
        p, kk = step >> 1, step & 1
        sg, buf = p & 3, step & 1
        out = []
        for st in range(2):
            out.append(f"ds_read_b128 {vr(BF+buf*8+st*4,4)}, v{VX1 if kk else VX0} offset:{sg*16384+st*2048}")
        for t in range(6):
            for h in range(2):
                out.append(f"ds_read_b64_tr_b16 {vr(AF+buf*24+t*4+h*2,2)}, v{VO if t&1 else VE} "
                           f"offset:{sg*12288+192*(32*kk+4*h)+32*t}")
        return out

    for p in range(4):
        for g in dma(p):
            e("\n".join(g))
    for r in range(ACC, ACC + 72):
        e(f"v_mov_b32 v{r}, 0")
    for r in range(16):
        e(f"v_mov_b32 v{SS+r}, 0")
    for r in range(4):
        e(f"v_mov_b32 v{ONES+r}, 0x3f803f80")
    e(f"""v_mov_b32 v{SYB}, {SYNC}
    s_lshl_b32 s42, s24, 2
    v_add_u32 v{SYS}, s42, v{SYB}""")
    if EA:
        if EA == 2:
            e("s_barrier")
        e("s_waitcnt vmcnt(21)")
        stamp(e, 1)
        arrive(e, 1)
        await_all(e, 1, peeked=False)
    else:
        e(f"""v_lshlrev_b32 v{T}, 4, v1
        v_add_u32 v{T}, {CST}, v{T}
        v_mov_b32 v{T+4}, 0
        v_mov_b32 v{T+5}, 0
        v_mov_b32 v{T+6}, 0
        v_mov_b32 v{T+7}, 0
        v_cmp_gt_u32 vcc, 32, v0
        s_nop 1
        s_and_saveexec_b64 s[42:43], vcc
        s_cbranch_execz A_nozero
        ds_write_b128 v{T}, {vr(T+4,4)}
        A_nozero:
        s_mov_b64 exec, -1
        s_waitcnt vmcnt(21) lgkmcnt(0)""")
        stamp(e, 1)
        e("s_barrier")
    stamp(e, 2)
    for r in reads(0):
        e(r)
    for step in range(20):
        p, kk = step >> 1, step & 1
        buf = step & 1
        e("s_waitcnt lgkmcnt(0)")
        if opt.get('a_steps') and step > 0:
            e(f"v_writelane_b32 v239, s56, {step}")
        ms = [(ACC + (st * 6 + t) * 4, AF + buf * 24 + t * 4, BF + buf * 8 + st * 4) for t in range(6) for st in range(2)]
        stat = []
        for st in range(2):
            stat.append((SS + 4 * st, ONES, BF + buf * 8 + st * 4))
            stat.append((SG + 4 * st, BF + buf * 8 + st * 4, BF + buf * 8 + st * 4))
        pre = opt.get('a_pre', 4)
        ms = stat + ms
        ls = opt.get('a_lsync', 1)
        if ls and kk == 1 and p < 9:
            p1, p2 = opt.get('a_p1', 3), opt.get('a_p2', 4)
            p0 = opt.get('a_p0', 0)
            for (d, a, b) in ms[:p0]:
                mfma(e, d, a, b)
            e(f"s_waitcnt vmcnt({7*(min(p+3,9)-(p+1))})")
            arrive(e, p + 2)
            for (d, a, b) in ms[p0:p1]:
                mfma(e, d, a, b)
            peek(e)
            for (d, a, b) in ms[p1:p2]:
                mfma(e, d, a, b)
            await_all(e, p + 2)
            pre = p2
        else:
            for (d, a, b) in ms[:pre]:
                mfma(e, d, a, b)
        if not ls and kk == 1 and p < 9:
            e(f"s_waitcnt vmcnt({7*(min(p+3,9)-(p+1))})")
            if not opt.get('a_nobar'):
                e("s_barrier")
        rds = reads(step + 1) if step < 19 and not opt.get('a_nords') else []
        dm = dma(p + 4) if (kk == 1 and p + 4 <= 9 and not opt.get('a_nodma')) else []
        if opt.get('a_steps'):
            e("s_memtime s[56:57]")
        per = opt.get('a_per', 3)
        for k, (d, a, b) in enumerate(ms[pre:]):
            mfma(e, d, a, b)
            for _ in range(per):
                if rds:
                    e(rds.pop(0))
            if not rds and dm:
                e("\n".join(dm.pop(0)))
        for g in dm:
            e("\n".join(g))
        lb = e.label("cs")
        e(f"s_cmp_lg_u32 s24, {step & 3}")
        e(f"s_cbranch_scc1 {lb}")
        for t in range(6):
            mfma(e, CS + 4 * t, AF + buf * 24 + 4 * t, ONES)
        e(f"{lb}:")
    stamp(e, 3)
    e(f"""s_nop 7
    v_lshlrev_b32 v{T}, 4, v3
    v_add_u32 v{T}, {CST}, v{T}
    v_cmp_eq_u32 vcc, 0, v2
    s_nop 1
    s_and_saveexec_b64 s[42:43], vcc""")
    for t in range(6):
        for r in range(4):
            e(f"ds_add_f32 v{T}, v{CS+4*t+r} offset:{64*t+4*r}")
    e("s_mov_b64 exec, -1")
    e(f"""v_and_b32 v{T+8}, 3, v2
    v_lshrrev_b32 v{T+9}, 2, v2""")
    for st in range(2):
        q = SUM + 2 + st
        e(f"v_mov_b32 v{SUM+st}, v{SS+4*st}")
        e(f"v_mov_b32 v{q}, v{SG+4*st}")
        for r in range(1, 4):
            e(f"""v_cmp_eq_u32 vcc, {r}, v{T+8}
            s_nop 1
            v_cndmask_b32 v{q}, v{q}, v{SG+4*st+r}, vcc""")
        e(f"""v_cmp_eq_u32 vcc, v{T+9}, v3
        s_nop 1
        v_cndmask_b32 v{q}, 0, v{q}, vcc""")
    for k in (2, 3):
        a, b = SUM + k, T + 8
        e(f"""v_mov_b32 v{b}, v{a}
        s_nop 1
        v_permlane16_swap_b32 v{a}, v{b}
        s_nop 1
        v_add_f32 v{a}, v{a}, v{b}
        v_mov_b32 v{b}, v{a}
        s_nop 1
        v_permlane32_swap_b32 v{a}, v{b}
        s_nop 1
        v_add_f32 v{a}, v{a}, v{b}""")
    NM, RI = T + 10, T + 14
    e("s_mov_b32 s44, 0x3acccccd")
    e("s_mov_b32 s45, 0x3727c5ac")
    for st in range(2):
        m, q = SUM + st, SUM + 2 + st
        e(f"""v_mul_f32 v{m}, s44, v{m}
        v_mul_f32 v{q}, s44, v{q}
        v_fma_f32 v{q}, -v{m}, v{m}, v{q}
        v_max_f32 v{q}, 0, v{q}
        v_cvt_pk_bf16_f32 v{m}, v{m}, v{m}
        v_cvt_pk_bf16_f32 v{q}, v{q}, v{q}
        v_lshlrev_b32 v{m}, 16, v{m}
        v_lshlrev_b32 v{q}, 16, v{q}
        v_add_f32 v{q}, s45, v{q}
        v_cvt_pk_bf16_f32 v{q}, v{q}, v{q}
        v_lshlrev_b32 v{q}, 16, v{q}
        v_sqrt_f32 v{q}, v{q}
        s_nop 0
        v_cvt_pk_bf16_f32 v{q}, v{q}, v{q}
        v_lshlrev_b32 v{q}, 16, v{q}
        v_rcp_f32 v{RI+2*st}, v{q}
        v_sub_f32 v{NM+2*st}, 0, v{m}""")
    e(f"""s_cmp_lg_u32 s26, 0
    s_cbranch_scc1 A_nostat
    v_add_u32 v{T+8}, s39, v2
    v_lshlrev_b32 v{T+8}, 3, v{T+8}
    v_add_u32 v{T+8}, {WS_ST}, v{T+8}
    v_cmp_gt_u32 vcc, 16, v1
    s_nop 1
    s_and_saveexec_b64 s[42:43], vcc""")
    for st in range(2):
        e(f"""v_mov_b32 v{T+18}, v{SUM+st}
        v_mov_b32 v{T+19}, v{RI+2*st}
        buffer_store_dwordx2 {vr(T+18,2)}, v{T+8}, s[16:19], 0 offen offset:{128*st}{SC(opt)}
        s_nop 1""")
    e("""s_mov_b64 exec, -1
    A_nostat:
    s_waitcnt lgkmcnt(0)""")
    if opt.get('a_lsync', 1):
        arrive(e, 12)
        await_all(e, 12, peeked=False)
    else:
        e("s_barrier")
    wl = []
    import kb
    if opt.get('fuse', 1) and opt.get('b_self', 0) and kb.nwl(opt):
        NW = kb.nwl(opt)
        kb.lds_wait(e, "A_wrdy", kb.S_WRDY, 1, 1)
        e(f"""s_and_b32 s50, s2, 1
        s_lshl_b32 s50, s50, 2
        s_bfe_u32 s51, s2, 0x20003
        s_add_u32 s50, s50, s51
        s_mul_i32 s50, s50, 48
        s_mul_i32 s51, s24, 12
        s_add_u32 s50, s50, s51
        s_mul_i32 s50, s50, 5120
        s_add_u32 s50, s50, {WS_W2 + 3 * 5120 - 1024}
        s_mul_i32 s51, s24, {NW * 5120}
        s_sub_u32 m0, s51, 1024
        v_lshlrev_b32 v252, 4, v1""")
        wl = ["""s_add_u32 m0, m0, 1024
        s_add_u32 s50, s50, 1024
        buffer_load_dwordx4 v252, s[16:19], s50 offen lds"""] * (NW * 5)
    stamp(e, 4)
    CSF, B1F = AF, AF + 24
    e(f"v_lshlrev_b32 v{T}, 4, v3")
    e(f"v_add_u32 v{T}, {CST}, v{T}")
    for t in range(6):
        e(f"ds_read_b128 {vr(CSF+4*t,4)}, v{T} offset:{64*t}")
    for t in range(6):
        for h in range(2):
            e(f"v_lshlrev_b32 v{B1F+4*t+2*h}, 16, v{B1+2*t+h}")
            e(f"v_and_b32 v{B1F+4*t+2*h+1}, 0xffff0000, v{B1+2*t+h}")
    C1, ONE = T + 20, T + 22
    e(f"""s_mov_b32 s46, 0xbdd2d3e8
    s_mov_b32 s47, 0xbdd2d3e8
    v_mov_b32 v{C1}, 0xc0135761
    v_mov_b32 v{C1+1}, 0xc0135761
    v_mov_b32 v{ONE}, 1.0
    v_mov_b32 v{ONE+1}, 1.0
    s_lshl_b32 s48, s25, 3
    s_lshl_b32 s49, s24, 1
    s_add_u32 s48, s48, s49
    s_mul_i32 s48, s48, 48
    s_mul_i32 s49, s26, 3
    s_add_u32 s48, s48, s49
    s_lshl_b32 s48, s48, 10
    s_add_u32 s49, s48, 49152
    v_lshlrev_b32 v{T+1}, 4, v1
    s_waitcnt lgkmcnt(0)""")
    X, Q, OUT = T + 24, T + 32, T + 40
    for st in range(2):
        for P in range(3):
            ob = OUT + 4 * ((st * 3 + P) & 3)
            for tt in range(2):
                t = 2 * P + tt
                a = ACC + (st * 6 + t) * 4
                prs = [(a + 2 * h, CSF + 4 * t + 2 * h, B1F + 4 * t + 2 * h, X + 2 * h + 4 * tt, Q + 2 * h + 4 * tt) for h in range(2)]
                if opt.get('a_nopk', 1):
                    el = [(aa + u, cs + u, b1 + u, x + u, q + u) for (aa, cs, b1, x, q) in prs for u in range(2)]
                    for tpl in ("v_fma_f32 v{x}, v{cs}, v{nm}, v{aa}", "v_fma_f32 v{x}, v{x}, v{ri}, v{b1}",
                                "v_mul_f32 v{q}, v{x}, v{x}", "v_fma_f32 v{q}, v{q}, s46, v{c1}",
                                "v_mul_f32 v{q}, v{q}, v{x}", "v_exp_f32 v{q}, v{q}", "v_add_f32 v{q}, 1.0, v{q}",
                                "v_rcp_f32 v{q}, v{q}", "v_mul_f32 v{x}, v{x}, v{q}"):
                        for (aa, cs, b1, x, q) in el:
                            e(tpl.format(aa=aa, cs=cs, b1=b1, x=x, q=q, nm=NM + 2 * st, ri=RI + 2 * st, c1=C1))
                else:
                    for (aa, cs, b1, x, q) in prs:
                        e(f"v_pk_fma_f32 {vr(x,2)}, {vr(cs,2)}, {vr(NM+2*st,2)}, {vr(aa,2)} op_sel_hi:[1,0,1]")
                    for (aa, cs, b1, x, q) in prs:
                        e(f"v_pk_fma_f32 {vr(x,2)}, {vr(x,2)}, {vr(RI+2*st,2)}, {vr(b1,2)} op_sel_hi:[1,0,1]")
                    for (aa, cs, b1, x, q) in prs:
                        e(f"v_pk_mul_f32 {vr(q,2)}, {vr(x,2)}, {vr(x,2)}")
                    for (aa, cs, b1, x, q) in prs:
                        e(f"v_pk_fma_f32 {vr(q,2)}, {vr(q,2)}, s[46:47], {vr(C1,2)}")
                    for (aa, cs, b1, x, q) in prs:
                        e(f"v_pk_mul_f32 {vr(q,2)}, {vr(q,2)}, {vr(x,2)}")
                    for (aa, cs, b1, x, q) in prs:
                        e(f"v_exp_f32 v{q}, v{q}")
                        e(f"v_exp_f32 v{q+1}, v{q+1}")
                    for (aa, cs, b1, x, q) in prs:
                        e(f"v_pk_add_f32 {vr(q,2)}, {vr(q,2)}, {vr(ONE,2)}")
                    for (aa, cs, b1, x, q) in prs:
                        e(f"v_rcp_f32 v{q}, v{q}")
                        e(f"v_rcp_f32 v{q+1}, v{q+1}")
                    for (aa, cs, b1, x, q) in prs:
                        e(f"v_pk_mul_f32 {vr(x,2)}, {vr(x,2)}, {vr(q,2)}")
                for h, (aa, cs, b1, x, q) in enumerate(prs):
                    e(f"v_cvt_pk_bf16_f32 v{ob+2*tt+h}, v{x}, v{x+1}")
                if tt == 0:
                    for _ in range(opt.get('b_wlper', 3)):
                        if wl:
                            e(wl.pop(0))
            e(f"buffer_store_dwordx4 {vr(ob,4)}, v{T+1}, s[16:19], s{48+st} offen offset:{1024*P}{SC(opt)}")
            for _ in range(5):
                if wl:
                    e(wl.pop(0))
    for g in wl:
        e(g)
    if opt.get('a_steps'):
        e(f"""s_lshl_b32 s58, s2, 2
        s_add_u32 s58, s58, s24
        s_lshl_b32 s58, s58, 8
        s_add_u32 s58, s58, {WS_Z}
        v_lshlrev_b32 v238, 2, v1
        buffer_store_dword v239, v238, s[16:19], s58 offen""")
    if opt.get('fuse', 1):
        endp(e, 0, False)
        import kb
        kb.gemm2(e, opt)
    else:
        endp(e, 0)


def prefetch_a(e, opt):
    e("s_load_dwordx2 s[40:41], s[0:1], %d" % KA['q'])
    e("s_load_dwordx2 s[42:43], s[0:1], %d" % KA['w1'])
    e("""s_and_b32 s44, s2, 7
    s_lshr_b32 s45, s2, 3
    s_sub_u32 s46, s24, 4
    s_mul_i32 s47, s46, 48
    v_add_u32 v4, s47, v1
    s_mov_b32 s48, 5462
    v_mul_lo_u32 v5, v4, s48
    v_lshrrev_b32 v5, 16, v5
    v_mul_u32_u24 v6, 12, v5
    v_sub_u32 v6, v4, v6
    s_lshr_b32 s47, s44, 1
    s_lshl_b32 s47, s47, 9
    s_lshl_b32 s49, s45, 4
    s_add_u32 s47, s47, s49
    v_add_u32 v5, s47, v5
    v_mul_u32_u24 v5, 1280, v5
    v_lshlrev_b32 v6, 6, v6
    v_add_u32 v5, v5, v6
    v_add_u32 v5, 512, v5
    v_bfrev_b32 v7, 1
    v_cmp_gt_u32 vcc, 48, v1
    s_nop 1
    v_cndmask_b32 v5, v7, v5, vcc
    s_mul_i32 s47, s46, 72
    s_mul_i32 s49, s45, 12
    s_add_u32 s49, s49, 256
    s_and_b32 s50, s44, 1
    s_mul_i32 s50, s50, 1536
    s_mov_b32 s48, 2731""")
    for h in range(2):
        e(f"""v_add_u32 v4, s47, v1
        v_add_u32 v4, {64*h}, v4
        v_mul_lo_u32 v8, v4, s48
        v_lshrrev_b32 v8, 16, v8
        v_mul_u32_u24 v6, 24, v8
        v_sub_u32 v6, v4, v6
        v_add_u32 v8, s49, v8
        v_mul_u32_u24 v8, 3072, v8
        v_lshlrev_b32 v6, 6, v6
        v_add_u32 v8, v8, v6
        v_add_u32 v{9+h}, s50, v8""")
    e("""v_cmp_gt_u32 vcc, 8, v1
    s_nop 1
    v_cndmask_b32 v10, v7, v10, vcc
    s_waitcnt lgkmcnt(0)""")
    srd(e, 52, 40, S * 1280)
    srd(e, 56, 42, D * 3072)
    e("""buffer_load_dword v252, v5, s[52:55], 0 offen
    buffer_load_dword v253, v9, s[56:59], 0 offen
    buffer_load_dword v254, v10, s[56:59], 0 offen""")


def conv(e, opt):
    ACC = 8
    FI, UI, AL = 40, 64, 80
    e("s_load_dwordx2 s[4:5], s[0:1], %d" % KA['ssm'])
    e("s_load_dwordx2 s[6:7], s[0:1], %d" % KA['Dv'])
    e("s_load_dwordx2 s[32:33], s[0:1], %d" % KA['dbg'])
    e("""s_and_b32 s25, s2, 7
    s_lshr_b32 s26, s2, 3
    s_sub_u32 s27, s24, 4
    s_cmp_eq_u32 s27, 3
    s_cbranch_scc1 A_cend
    s_mul_i32 s28, s25, 80
    s_add_u32 s28, s28, s27
    s_cmp_ge_u32 s26, 16
    s_cbranch_scc1 A_two
    s_mul_i32 s29, s26, 3
    s_branch A_chan
    A_two:
    s_cmp_eq_u32 s27, 2
    s_cbranch_scc1 A_cend
    s_lshl_b32 s29, s26, 1
    s_add_u32 s29, s29, 16
    A_chan:
    s_add_u32 s28, s28, s29""")
    e(f"""s_mul_i32 s30, s27, {CONV_LDS}
    s_add_u32 s30, s30, {PREP}
    s_lshl_b32 s36, s28, 12
    v_lshlrev_b32 v4, 4, v1
    s_waitcnt lgkmcnt(0)""")
    srd(e, 8, 4, D * 4096)
    srd(e, 12, 6, D * 2)
    srd(e, 20, 32, 256)
    UB = 2 * 4160
    e("s_mov_b32 s37, s36")
    for q in range(4):
        e(f"buffer_load_dwordx4 {vr(FI+6*q,4)}, v4, s[8:11], s37 offen")
        e(f"buffer_load_dword v{FI+6*q+4}, v4, s[8:11], s37 offen offset:16")
        e("s_add_u32 s37, s37, 1024")
    e(f"""v_and_b32 v205, 1, v3
    v_add_u32 v200, v2, v205
    v_subrev_u32 v200, 16, v200
    v_lshlrev_b32 v201, 1, v200
    v_add_u32 v201, s36, v201
    v_cmp_gt_i32 vcc, 0, v200
    v_bfrev_b32 v202, 1
    s_nop 0
    v_cndmask_b32 v201, v201, v202, vcc
    buffer_load_ushort v204, v201, s[8:11], 0 offen
    s_lshl_b32 s38, s28, 1
    v_mov_b32 v201, s38
    buffer_load_ushort v206, v201, s[12:15], 0 offen
    v_mul_u32_u24 v202, 4160, v205
    v_lshlrev_b32 v203, 1, v2
    v_add_u32 v202, v202, v203
    v_add_u32 v202, s30, v202""")
    def lds_wait(name, addr, val, all4, sleep):
        e(f"v_mov_b32 v{SYB}, {addr}")
        e(f"{name}:")
        if all4:
            e(f"""ds_read_b128 {vr(SY0,4)}, v{SYB}
            s_waitcnt lgkmcnt(0)
            v_min3_u32 v{SY0}, v{SY0}, v{SY0+1}, v{SY0+2}
            v_min_u32 v{SY0}, v{SY0}, v{SY0+3}""")
        else:
            e(f"""ds_read_b32 v{SY0}, v{SYB}
            s_waitcnt lgkmcnt(0)""")
        e(f"""v_cmp_gt_u32 vcc, {val}, v{SY0}
        s_nop 1
        s_cbranch_vccz {name}_ok
        s_sleep {sleep}
        s_branch {name}
        {name}_ok:""")
    e("""s_cmp_lg_u32 s27, 0
    s_cbranch_scc1 A_follow""")
    e(f"""v_mov_b32 v210, 0
    s_mov_b32 s40, 0
    A_seen:
    buffer_load_dword v212, v210, s[20:23], 0 offen sc1
    s_add_u32 s40, s40, 1
    s_waitcnt vmcnt(0)
    v_readfirstlane_b32 s38, v212
    s_cmp_eq_u32 s38, 1
    s_cbranch_scc1 A_seen_ok
    s_cmp_ge_u32 s40, 0x40000
    s_cbranch_scc1 A_seen_ok
    s_sleep 8
    s_branch A_seen
    A_seen_ok:""")
    if opt.get('c_gate', 0):
        lds_wait("A_stage", SYNC + 24, opt['c_gate'], False, 4)
    else:
        lds_wait("A_stage", SYNC, opt.get('c_stage', 5) + 1, True, 2)
    e(f"""s_cmp_ge_u32 s26, 16
    s_cselect_b32 s38, 1, 2
    s_add_u32 s38, s38, s28
    s_lshr_b32 s38, s38, 6
    s_lshl_b32 s38, s38, 4
    s_lshr_b32 s39, s28, 6
    s_lshl_b32 s39, s39, 4
    v_mov_b32 v210, s38
    v_mov_b32 v211, s39
    v_and_b32 v212, 16, v1
    v_cmp_eq_u32 vcc, 0, v212
    s_mov_b32 s40, 0
    v_cndmask_b32 v210, v210, v211, vcc
    v_add_u32 v210, v210, v2
    v_lshlrev_b32 v210, 7, v210
    v_add_u32 v210, {WS_FL}, v210
    A_poll:
    s_add_u32 s40, s40, 1
    s_cmp_ge_u32 s40, 0x40000
    s_cbranch_scc1 A_ready
    buffer_load_dword v212, v210, s[16:19], 0 offen sc1
    s_waitcnt vmcnt(0)
    v_cmp_ne_u32 vcc, 1, v212
    s_nop 1
    s_cbranch_vccz A_ready
    s_sleep {opt.get('c_sleep', 8)}
    s_branch A_poll
    A_ready:
    v_mov_b32 v210, {SYNC + 20}
    v_mov_b32 v211, 1
    s_mov_b64 exec, 1
    ds_write_b32 v210, v211
    s_mov_b64 exec, -1
    s_branch A_go
    A_follow:""")
    lds_wait("A_fw", SYNC + 20, 1, False, 2)
    e("A_go:")
    stamp(e, 3)
    e(f"s_add_u32 s37, s36, {WS_U}")
    for q in range(4):
        e(f"buffer_load_dwordx4 {vr(UI+4*q,4)}, v4, s[16:19], s37 offen sc1")
        e("s_add_u32 s37, s37, 1024")
    stamp(e, 4)
    e(f"s_setprio {opt.get('c_prio', 1)}")
    e(f"""v_add_u32 v207, s30, v4
    v_lshlrev_b32 v201, 3, v1
    v_add_u32 v201, s30, v201
    v_mov_b32 v208, 0
    v_mov_b32 v209, 0
    ds_write_b64 v201, v[208:209] offset:{UB}
    s_waitcnt vmcnt(4)
    ds_write_b16 v202, v204
    v_lshlrev_b32 v7, 16, v206""")
    for q in range(4):
        f = FI + 6 * q
        a = AL + 8 * (q & 1)
        e(f"ds_write_b128 v207, {vr(f,4)} offset:{32+1024*q}")
        for k in range(4):
            e(f"v_alignbyte_b32 v{a+k}, v{f+k+1}, v{f+k}, 2")
        e(f"ds_write_b128 v207, {vr(a,4)} offset:{4160+32+1024*q}")
    e("s_waitcnt vmcnt(0)")
    for q in range(4):
        e(f"ds_write_b128 v207, {vr(UI+4*q,4)} offset:{UB+512+1024*q}")
    e(f"""v_lshlrev_b32 v201, 3, v3
    v_sub_u32 v201, v2, v201
    v_add_u32 v201, 9, v201
    v_and_b32 v203, 1, v201
    v_sub_u32 v201, v201, v203
    v_add_u32 v201, 16, v201
    v_lshlrev_b32 v201, 1, v201
    v_mul_u32_u24 v203, 4160, v203
    v_add_u32 v201, v201, v203
    v_add_u32 v212, s30, v201
    v_add_u32 v213, 1024, v212
    v_add_u32 v214, 2048, v212
    v_add_u32 v215, 3072, v212
    v_lshlrev_b32 v201, 5, v2
    v_lshlrev_b32 v203, 4, v3
    v_add_u32 v201, v201, v203
    v_add_u32 v201, s30, v201
    v_add_u32 v6, {UB+480-448}, v201""")
    for r in range(32):
        e(f"v_mov_b32 v{ACC+r}, 0")
    e("s_waitcnt lgkmcnt(0)")

    def rd(j0):
        out = []
        for i in range(8):
            a = (40 if (j0 & 1) == 0 else 104) + 4 * i
            b = (72 if (j0 & 1) == 0 else 136) + 4 * i
            out.append(f"ds_read_b128 {vr(b,4)}, v6 offset:{448 + 64*(8*i - j0)}")
            o = 128 * (i & 1) + 16 * j0
            out.append(f"ds_read2_b32 {vr(a,2)}, v{212+(i>>1)} offset0:{o} offset1:{o+1}")
            out.append(f"ds_read2_b32 {vr(a+2,2)}, v{212+(i>>1)} offset0:{o+2} offset1:{o+3}")
        return out

    for r in rd(0):
        e(r)
    for j0 in range(8):
        a0 = 40 if (j0 & 1) == 0 else 104
        b0 = 72 if (j0 & 1) == 0 else 136
        fill = rd(j0 + 1) if j0 < 7 else []
        e("s_waitcnt lgkmcnt(0)")
        n = 0
        for i in range(8):
            for c in range(i, 8):
                mfma(e, ACC + 4 * c, a0 + 4 * i, b0 + 4 * (c - i))
                if fill and n < 24:
                    e(fill.pop(0))
                n += 1
    stamp(e, 5)
    UV = 40
    e(f"""v_lshrrev_b32 v201, 1, v3
    v_lshlrev_b32 v201, 4, v201
    v_and_b32 v203, 1, v3
    v_xor_b32 v203, 1, v203
    v_lshlrev_b32 v203, 3, v203
    v_add_u32 v201, v201, v203
    v_lshlrev_b32 v203, 5, v2
    v_add_u32 v201, v201, v203
    v_add_u32 v201, s30, v201
    v_lshlrev_b32 v202, 3, v3
    v_add_u32 v202, v202, v203
    s_add_u32 s37, s36, {WS_Z}""")
    for c in range(8):
        e(f"ds_read_b64 {vr(UV+2*c,2)}, v201 offset:{UB+512+512*c}")
    e("s_waitcnt lgkmcnt(0)")
    for c in range(8):
        a, u, t = ACC + 4 * c, UV + 2 * c, 60 + 8 * (c & 1)
        e(f"""v_cvt_pk_bf16_f32 v{t}, v{a}, v{a+1}
        v_cvt_pk_bf16_f32 v{t+1}, v{a+2}, v{a+3}
        v_lshlrev_b32 v{a}, 16, v{t}
        v_and_b32 v{a+1}, 0xffff0000, v{t}
        v_lshlrev_b32 v{a+2}, 16, v{t+1}
        v_and_b32 v{a+3}, 0xffff0000, v{t+1}
        v_and_b32 v{t+2}, 0xffff0000, v{u+1}
        v_lshlrev_b32 v{t+3}, 16, v{u+1}
        v_and_b32 v{t+4}, 0xffff0000, v{u}
        v_lshlrev_b32 v{t+5}, 16, v{u}
        v_fma_f32 v{a}, v{t+2}, v7, v{a}
        v_fma_f32 v{a+1}, v{t+3}, v7, v{a+1}
        v_fma_f32 v{a+2}, v{t+4}, v7, v{a+2}
        v_fma_f32 v{a+3}, v{t+5}, v7, v{a+3}
        v_cvt_pk_bf16_f32 v{80+2*c}, v{a}, v{a+1}
        v_cvt_pk_bf16_f32 v{81+2*c}, v{a+2}, v{a+3}
        buffer_store_dwordx2 {vr(80+2*c,2)}, v202, s[16:19], s37 offen offset:{512*c}{SC(opt)}""")
    if opt.get('fuse', 1):
        e(f"""s_waitcnt vmcnt(0)
        v_mov_b32 v9, {SYNC + 28}
        v_mov_b32 v10, 1
        v_mov_b32 v12, 0
        s_mov_b64 exec, 1
        ds_add_rtn_u32 v11, v9, v10
        s_cmp_ge_u32 s26, 16
        s_cselect_b32 s39, 1, 2
        s_waitcnt lgkmcnt(0)
        v_readfirstlane_b32 s38, v11
        s_cmp_lg_u32 s38, s39
        s_cbranch_scc1 A_nozflag
        s_lshl_b32 s38, s2, 7
        s_add_u32 s38, s38, {WS_FL + 8}
        buffer_store_dword v10, v12, s[16:19], s38 offen sc1
        A_nozflag:
        s_mov_b64 exec, -1""")
    endp(e, 0)
    e("A_cend:")
    if opt.get('fuse', 1):
        e("""s_cmp_eq_u32 s24, 7
        s_cbranch_scc1 B_aux""")
    endp(e, 0)


def prep(e, opt):
    e("""s_lshl_b32 s25, s2, 2
    s_add_u32 s25, s25, s24
    s_sub_u32 s25, s25, 4
    s_sub_u32 s26, s24, 4
    s_mul_i32 s26, s26, %d""" % CONV_LDS)
    e(f"s_add_u32 s26, s26, {PREP}")
    e("s_load_dwordx2 s[34:35], s[0:1], %d" % KA['ws'])
    if opt.get('a_early', 2) == 1:
        e("s_barrier")
    if opt.get('p_prio', 0):
        e(f"s_setprio {opt['p_prio']}")
    if opt.get('a_pf', 0):
        prefetch_a(e, opt)
    e("s_cmp_ge_u32 s25, 640")
    e("s_cbranch_scc1 A_w2prep")
    e("s_load_dwordx2 s[4:5], s[0:1], %d" % KA['k'])
    e("s_load_dwordx2 s[6:7], s[0:1], %d" % KA['v'])
    e("s_load_dwordx2 s[32:33], s[0:1], %d" % KA['shift'])
    e("""s_lshr_b32 s28, s2, 4
    s_and_b32 s27, s2, 15
    s_lshl_b32 s27, s27, 2
    s_add_u32 s27, s27, s24
    s_sub_u32 s27, s27, 4
    v_lshrrev_b32 v4, 3, v1
    v_and_b32 v5, 7, v1
    s_lshl_b32 s29, s27, 5
    v_lshlrev_b32 v6, 2, v4
    v_add_u32 v6, s29, v6
    v_mul_u32_u24 v6, 1280, v6
    s_lshl_b32 s30, s28, 7
    v_lshlrev_b32 v7, 4, v5
    v_add_u32 v7, s30, v7
    v_add_u32 v6, v6, v7
    v_lshlrev_b32 v8, 2, v7
    s_waitcnt lgkmcnt(0)""")
    srd(e, 8, 4, S * 1280)
    srd(e, 12, 6, S * 1280)
    srd(e, 20, 32, D * 8)
    srd(e, 16, 34, WS_END)
    K, V, W = 16, 44, 60
    for t in range(7):
        e(f"v_add_u32 v{9}, {(t-3)*1280 & 0xffffffff}, v6")
        e(f"buffer_load_dwordx4 {vr(K+4*t,4)}, v9, s[8:11], 0 offen")
    for t in range(4):
        e(f"buffer_load_dwordx4 {vr(V+4*t,4)}, v6, s[12:15], 0 offen offset:{1280*t}")
    for t in range(4):
        e(f"buffer_load_dwordx4 {vr(W+4*t,4)}, v8, s[20:23], 0 offen offset:{16*t}")
    e("s_load_dwordx2 s[6:7], s[0:1], %d" % KA['dbg'])
    e(f"""s_cmp_lg_u32 s25, 3
    s_cbranch_scc1 A_noclr
    v_lshlrev_b32 v9, 7, v1
    v_mov_b32 v10, 0
    v_mov_b32 v11, 0
    v_mov_b32 v12, 0
    v_mov_b32 v13, 0
    s_mov_b32 s38, {WS_FL}
    buffer_store_dwordx4 v[10:13], v9, s[16:19], s38 offen sc1
    s_add_u32 s38, s38, 8192
    buffer_store_dwordx4 v[10:13], v9, s[16:19], s38 offen sc1
    s_add_u32 s38, s38, 8192
    buffer_store_dwordx4 v[10:13], v9, s[16:19], s38 offen sc1
    s_add_u32 s38, s38, 8192
    buffer_store_dwordx4 v[10:13], v9, s[16:19], s38 offen sc1
    A_noclr:
    s_waitcnt lgkmcnt(0)""")
    srd(e, 40, 6, 256)
    if opt.get('a_early', 2) != 1:
        e("s_barrier")
    if 'p_prio2' in opt:
        e(f"s_setprio {opt['p_prio2']}")
    stamp(e, 1)
    e("s_waitcnt vmcnt(0)")
    e(f"""s_cmp_lg_u32 s25, 3
    s_cbranch_scc1 A_noann
    v_mov_b32 v9, 0
    v_mov_b32 v10, 1
    s_mov_b64 exec, 1
    buffer_store_dword v10, v9, s[40:43], 0 offen sc1
    s_mov_b64 exec, -1
    A_noann:""")
    stamp(e, 2)
    KF, WF, VF, R, PK = 80, 136, 168, 200, 232
    for t in range(7):
        for r in range(4):
            e(f"v_lshlrev_b32 v{KF+8*t+2*r}, 16, v{K+4*t+r}")
            e(f"v_and_b32 v{KF+8*t+2*r+1}, 0xffff0000, v{K+4*t+r}")
    for r in range(16):
        e(f"v_lshlrev_b32 v{WF+2*r}, 16, v{W+r}")
        e(f"v_and_b32 v{WF+2*r+1}, 0xffff0000, v{W+r}")
    if not opt.get('a_lsync', 1):
        e("s_barrier")
    for r in range(16):
        e(f"v_lshlrev_b32 v{VF+2*r}, 16, v{V+r}")
        e(f"v_and_b32 v{VF+2*r+1}, 0xffff0000, v{V+r}")
    for i in range(4):
        for j in range(4):
            for c in range(8):
                k = KF + 8 * (i + 3 - j) + c
                wv = WF + 4 * c + j
                if j == 0:
                    e(f"v_mul_f32 v{R+8*i+c}, v{k}, v{wv}")
                else:
                    e(f"v_fma_f32 v{R+8*i+c}, v{k}, v{wv}, v{R+8*i+c}")
        for c in range(8):
            e(f"v_mul_f32 v{R+8*i+c}, v{R+8*i+c}, v{VF+8*i+c}")
        if i & 1 and not opt.get('a_lsync', 1):
            e("s_barrier")
    for c in range(8):
        e(f"v_cvt_pk_bf16_f32 v{PK+2*c}, v{R+24+c}, v{R+16+c}")
        e(f"v_cvt_pk_bf16_f32 v{PK+2*c+1}, v{R+8+c}, v{R+c}")
    e("""v_lshlrev_b32 v9, 5, v5
    v_lshrrev_b32 v10, 1, v4
    v_add_u32 v9, v9, v10
    v_and_b32 v10, 1, v4
    v_xor_b32 v10, 1, v10
    v_lshlrev_b32 v10, 3, v10
    v_add_u32 v10, s26, v10""")
    for c in range(8):
        e(f"""v_add_u32 v11, {4*c}, v9
        v_xor_b32 v11, v11, v5
        v_lshlrev_b32 v11, 4, v11
        v_add_u32 v11, v11, v10
        ds_write_b64 v11, {vr(PK+2*c,2)}""")
    e(f"""v_lshlrev_b32 v9, 4, v1
    v_add_u32 v9, s26, v9
    s_lshl_b32 s30, s28, 18
    s_lshl_b32 s31, s27, 6
    s_add_u32 s30, s30, s31
    s_add_u32 s30, s30, {WS_U}
    s_waitcnt lgkmcnt(0)""")
    for q in range(4):
        e(f"ds_read_b128 {vr(16+4*q,4)}, v9 offset:{1024*q}")
    for q in range(4):
        e(f"""v_lshrrev_b32 v10, 5, v1
        v_add_u32 v10, {2*q}, v10
        v_add_u32 v11, {64*q}, v1
        v_xor_b32 v11, v11, v10
        v_lshrrev_b32 v10, 2, v11
        v_and_b32 v11, 3, v11
        v_lshlrev_b32 v10, 12, v10
        v_lshlrev_b32 v11, 4, v11
        v_add_u32 v{40+q}, v10, v11""")
    for q in range(4):
        e(f"s_waitcnt lgkmcnt({3-q})")
        e(f"buffer_store_dwordx4 {vr(16+4*q,4)}, v{40+q}, s[16:19], s30 offen sc1")
    e(f"""s_mov_b32 s49, {WS_FL}
    A_post:
    v_mov_b32 v12, 0
    buffer_load_dword v13, v12, s[40:43], 0 offen sc1
    s_waitcnt vmcnt(0)
    v_mov_b32 v9, {SYNC + 16}
    v_mov_b32 v10, 1
    s_mov_b64 exec, 1
    ds_add_rtn_u32 v11, v9, v10
    s_waitcnt lgkmcnt(0)
    v_readfirstlane_b32 s38, v11
    s_cmp_lg_u32 s38, 3
    s_cbranch_scc1 A_noflag
    s_mov_b32 s39, 0
    A_clr:
    v_readfirstlane_b32 s38, v13
    s_cmp_eq_u32 s38, 1
    s_cbranch_scc1 A_flag
    s_add_u32 s39, s39, 1
    s_cmp_ge_u32 s39, 0x40000
    s_cbranch_scc1 A_flag
    s_sleep 8
    buffer_load_dword v13, v12, s[40:43], 0 offen sc1
    s_waitcnt vmcnt(0)
    s_branch A_clr
    A_flag:
    s_lshl_b32 s38, s2, 7
    s_add_u32 s38, s38, s49
    buffer_store_dword v10, v12, s[16:19], s38 offen sc1
    A_noflag:
    s_mov_b64 exec, -1
    s_branch A_conv""")
    e("A_w2prep:")
    e("s_load_dwordx2 s[4:5], s[0:1], %d" % KA['w2'])
    e("s_load_dwordx2 s[6:7], s[0:1], %d" % KA['dbg'])
    e("""s_sub_u32 s25, s25, 640
    s_mul_i32 s27, s25, 1366
    s_lshr_b32 s27, s27, 16
    s_mul_i32 s28, s27, 48
    s_sub_u32 s28, s25, s28
    s_mul_i32 s29, s28, 40960
    s_mul_i32 s30, s27, 160
    s_add_u32 s29, s29, s30
    s_mov_b32 s38, 6554
    s_waitcnt lgkmcnt(0)""")
    srd(e, 8, 4, F * 1280)
    srd(e, 16, 34, WS_END)
    srd(e, 40, 6, 256)
    for q in range(5):
        e(f"""v_add_u32 v4, {64*q}, v1
        v_mul_lo_u32 v5, v4, s38
        v_lshrrev_b32 v5, 16, v5
        v_mul_u32_u24 v6, 10, v5
        v_sub_u32 v6, v4, v6
        v_mul_u32_u24 v5, 1280, v5
        v_lshlrev_b32 v6, 4, v6
        v_add_u32 v5, v5, v6
        s_add_u32 m0, s26, {1024*q}
        s_nop 0
        buffer_load_dwordx4 v5, s[8:11], s29 offen lds""")
    if opt.get('a_early', 2) != 1:
        e("s_barrier")
    e(f"""v_bfe_u32 v4, v1, 2, 2
    v_lshlrev_b32 v5, 2, v3
    v_add_u32 v4, v4, v5
    v_mul_u32_u24 v4, 160, v4
    v_and_b32 v5, 3, v1
    v_lshlrev_b32 v5, 3, v5
    v_add_u32 v4, v4, v5
    v_add_u32 v4, s26, v4
    s_mul_i32 s30, s25, 5120
    s_add_u32 s30, s30, {WS_W2}
    v_lshlrev_b32 v6, 4, v1
    v_add_u32 v7, 4096, v6
    s_waitcnt vmcnt(0)""")
    for t in range(5):
        for h in range(2):
            e(f"ds_read_b64_tr_b16 {vr(16+4*t+2*h,2)}, v4 offset:{32*t+2560*h}")
    e("s_waitcnt lgkmcnt(0)")
    for t in range(5):
        e(f"buffer_store_dwordx4 {vr(16+4*t,4)}, v{7 if t==4 else 6}, s[16:19], s30 offen offset:{0 if t==4 else 1024*t}{SC(opt)}")
    if opt.get('fuse', 1):
        e(f"""s_mov_b32 s49, {WS_FL + 12}
        s_branch A_post""")
    e("s_waitcnt vmcnt(0)")
    e("A_conv:")
    conv(e, opt)


def kernel_a(e, label, opt):
    e(f".globl {label}\n.p2align 8\n.type {label},@function\n{label}:")
    e("""s_cmp_ge_u32 s2, 256
    s_cbranch_scc1 A_exit
    v_lshrrev_b32 v1, 6, v0
    s_nop 0
    v_readfirstlane_b32 s24, v1
    v_and_b32 v1, 63, v0
    v_and_b32 v2, 15, v1
    v_lshrrev_b32 v3, 4, v1
    s_nop 1
    """)
    stamp(e, 0)
    e("""s_cmp_ge_u32 s24, 4
    s_cbranch_scc1 A_prep""")
    gemm1(e, opt)
    e("A_prep:")
    prep(e, opt)
    if opt.get('fuse', 1):
        import kb
        e("B_aux:")
        kb.aux(e, opt)
    e("A_exit:")
    e("s_endpgm")
```
